```python
import torch

def _softmax(x, axis=-1):
    return torch.softmax(x, dim=axis)
def _gelu(x):
    return torch.nn.functional.gelu(x, approximate="tanh")
def _silu(x):
    return torch.nn.functional.silu(x)
def _sigmoid(x):
    return torch.sigmoid(x)
def _layernorm(x, axis=-1, eps=1e-5):
    m = x.mean(dim=axis, keepdim=True)
    v = x.var(dim=axis, keepdim=True, unbiased=False)
    return (x - m) / torch.sqrt(v + eps)
def _scatter_add(tgt, idx, src, axis=0):
    return tgt.clone().index_add_(axis, idx, src)
def _segment_sum(src, seg, n):
    out = torch.zeros((n,) + src.shape[1:], dtype=src.dtype)
    return out.index_add_(0, seg, src)
def _pad(x, pw):
    flat = tuple(v for pair in reversed(pw) for v in pair)
    return torch.nn.functional.pad(x, flat)

kernel_name = 'gated_mix__softmax_full_mha__moe_arch_mod__prompt'

def setup_inputs():

    _w = (lambda a: (lambda t: t.to(torch.bfloat16) if t.is_floating_point() else t)(torch.as_tensor(a)))
    def _A_setup():
        B, S, D = 1, 2048, 1024
        return {
            "x": _w((lambda *s: torch.randn(*s, dtype=torch.bfloat16) * 0.05)(B, S, D)),
            "wqkv": _w((lambda *s: torch.randn(*s, dtype=torch.bfloat16) * 0.8)(D, 3 * D)),
            "wo": _w((lambda *s: torch.randn(*s, dtype=torch.bfloat16) * 0.1)(D, D)),
        }
    _A_in = _A_setup()

    def _B_setup():
        B, S, D, F, C = 1, 2048, 1024, 3584, 1
        return {
            "x": _w((lambda *s: torch.randn(*s, dtype=torch.bfloat16) * 0.05)(B, S, D)),
            "w_r": _w((lambda *s: torch.randn(*s, dtype=torch.bfloat16) * 3.2)(D)),
            "w_gate": _w((lambda *s: torch.randn(*s, dtype=torch.bfloat16) * 0.2)(D, F)),
            "w_up": _w((lambda *s: torch.randn(*s, dtype=torch.bfloat16) * 0.2)(D, F)),
            "w_down": _w((lambda *s: torch.randn(*s, dtype=torch.bfloat16) * 0.2)(F, D)),
        }
    _B_in = _B_setup()

    return {
        "A_x": _A_in["x"],
        "A_wqkv": _A_in["wqkv"],
        "A_wo": _A_in["wo"],
        "B_x": _B_in["x"],
        "B_w_r": _B_in["w_r"],
        "B_w_gate": _B_in["w_gate"],
        "B_w_up": _B_in["w_up"],
        "B_w_down": _B_in["w_down"],
        "gate_w": _w((lambda *s: torch.randn(*s, dtype=torch.bfloat16) * 0.05)(1024) * 16.0),
    }

def reference(A_x, A_wqkv, A_wo, B_x, B_w_r, B_w_gate, B_w_up, B_w_down, gate_w):
    def _A_ref(x, wqkv, wo):
        B, S, D = x.shape
        H = 32; Dh = D // H
        qkv = (lambda x, *d: x.permute(*d))((x @ wqkv).reshape(B, S, 3, H, Dh), 2, 0, 3, 1, 4)
        q, k, v = qkv[0], qkv[1], qkv[2]
        scale = Dh ** -0.5
        scores = torch.einsum("bhqd,bhkd->bhqk", q, k) * scale
        p = _softmax(scores, axis=-1)
        o = torch.einsum("bhqk,bhkd->bhqd", p, v)
        return (lambda x, *d: x.permute(*d))(o, 0, 2, 1, 3).reshape(B, S, D) @ wo

    def _B_ref(x, w_r, w_gate, w_up, w_down):
        B, S, D = x.shape
        C = 1
        r = x @ w_r
        idx = torch.argsort(-r, axis=-1)[:, :C]
        idx_e = (lambda x, n, axis: torch.repeat_interleave(x, n, dim=axis))(idx.reshape(B, C, 1), D, axis=2)
        x_sel = (lambda x, i, axis: torch.take_along_dim(x, i, dim=axis))(x, idx_e, axis=1)
        g = _silu(x_sel @ w_gate)
        u = x_sel @ w_up
        y = (g * u) @ w_down
        r_sel = _sigmoid((lambda x, i, axis: torch.take_along_dim(x, i, dim=axis))(r, idx, axis=1))
        y = y * r_sel.reshape(B, C, 1)
        b_off = (torch.arange(B) * S).reshape(B, 1)
        flat_idx = (idx + b_off).reshape(B * C)
        zero = (x * 0.0).reshape(B * S, D)
        upd = _scatter_add(zero, flat_idx, y.reshape(B * C, D), axis=0)
        return x + upd.reshape(B, S, D)

    x = A_x
    g = _sigmoid((x * gate_w).sum(-1, keepdims=True))
    a = _A_ref(x, A_wqkv, A_wo)
    b = _B_ref(x, B_w_r, B_w_gate, B_w_up, B_w_down)
    return g * a + (1 - g) * b
```

```python
class Asm:
    def __init__(self):
        self.lines = []
        self.uid = 0
    def __call__(self, s):
        for l in s.split("\n"):
            l = l.strip()
            if l: self.lines.append("    " + l)
    def label(self, n): self.lines.append(n + ":")
    def c(self, s): self.lines.append("    ; " + s)
    def raw(self, s): self.lines.append(s)
    def newlabel(self, p="L"):
        self.uid += 1
        return f"{p}_{self.uid}"
    def text(self): return "\n".join(self.lines) + "\n"

def vr(a, n=1):
    return f"v{a}" if n == 1 else f"v[{a}:{a+n-1}]"
def sr(a, n=1):
    return f"s{a}" if n == 1 else f"s[{a}:{a+n-1}]"
def mfma32(d, a, b, c):
    cs = "0" if c is None else vr(c, 16)
    return f"v_mfma_f32_32x32x16_bf16 {vr(d,16)}, {vr(a,4)}, {vr(b,4)}, {cs}"
def mfma16(d, a, b, c):
    cs = "0" if c is None else vr(c, 4)
    return f"v_mfma_f32_16x16x32_bf16 {vr(d,4)}, {vr(a,4)}, {vr(b,4)}, {cs}"
def srd(A, d, plo, nbytes):
    A(f"s_mov_b32 s{d}, s{plo}")
    A(f"s_and_b32 s{d+1}, s{plo+1}, 0xffff")
    A(f"s_mov_b32 s{d+2}, {nbytes}")
    A(f"s_mov_b32 s{d+3}, 0x20000")

HEADER = """; @launch grid=({grid},1,1) block=({block},1,1) lds={lds}
.amdgcn_target "amdgcn-amd-amdhsa--gfx950"
.text
.globl {name}
.p2align 8
.type {name},@function
{name}:
"""
FOOTER = """.section .rodata,"a"
.p2align 6
.amdhsa_kernel {name}
  .amdhsa_next_free_vgpr {nvgpr}
  .amdhsa_next_free_sgpr 102
  .amdhsa_accum_offset {accum}
  .amdhsa_group_segment_fixed_size 0
  .amdhsa_kernarg_size 96
  .amdhsa_user_sgpr_count 2
  .amdhsa_user_sgpr_kernarg_segment_ptr 1
  .amdhsa_system_sgpr_workgroup_id_x 1
.end_amdhsa_kernel
"""
```

```python
import sys, math, struct
from asmlib import *

KN = "gated_mix__softmax_full_mha__moe_arch_mod__prompt_kernel"
def f32bits(x): return struct.unpack("<I", struct.pack("<f", x))[0]
QSCALE = math.log2(math.e) / math.sqrt(32.0)
LOG2E = math.log2(math.e)

WS_KV = 0
WS_O  = 8 << 20
WS_G  = 12 << 20
WS_GU = WS_G + 0x4000
WS_YP = WS_G + 0x40000
WS_F1 = WS_G + 0x60000
WS_F3 = WS_F1 + 0x800
WS_KEYS = WS_F1 + 0x1000
WS_FA = WS_F1 + 0x2000
WS_KVA = 20 << 20
WS_ST = 16 << 20
DBG_C0, DBG_KEY, DBG_C1 = 0, 128, 132

G_STAGE = 40960; G_NSLOT = 3
L_TAG = 3 * 40960 + 4096
L_WR = 3 * 40960
KV_SLOT = 32768; KV_NSLOT = 3
L_R1 = 98304
L_R2 = 131072
L_CNT = L_R1
L_LAND = L_R1 + 32
L_PROG = L_R1 + 256
L_PART = L_R1 + 2048
L_H = L_R1 + 4608
LDS_BYTES = 163840

SPIN_MAX = 1 << 16

P_X, P_W, P_WO, P_BX, P_WR, P_WG, P_WU, P_WD, P_GW, P_OUT, P_DBG, P_WS = [16 + 2 * i for i in range(12)]
SX, SW, SWS, SDBG, SA, SB = 40, 44, 48, 52, 56, 60
S_WAVE, S_RB, S_HP, S_U, S_T0 = 64, 65, 66, 67, 68
S_SEL, S_KEY = 70, 71
S_XCC = 73
S_TAG = 15
S_STI = 72
S_TMP = 74


class Gen:
    def __init__(self, rot=0, stamp=False, moe=True, stop_after=3, opts=None):
        self.A = Asm()
        self.rot = rot; self.stamp = stamp; self.moe = moe; self.stop_after = stop_after
        self.o = opts or {}

    def stampit(self, vreg):
        if not self.stamp: return
        A = self.A
        if self.o.get("rt", 0):
            A("s_memrealtime s[98:99]"); A("s_waitcnt lgkmcnt(0)"); A("s_sub_u32 s98, s98, s100"); A("s_add_u32 s98, s98, 1")
        else:
            A("s_memtime s[98:99]")
            A("s_waitcnt lgkmcnt(0)")
            A(f"s_sub_u32 s98, s98, s{S_T0}")
        A(f"s_mov_b32 m0, s{S_STI}")
        A("s_nop 1")
        A(f"v_writelane_b32 v{vreg}, s98, m0")
        A(f"s_add_u32 s{S_STI}, s{S_STI}, 1")

    def stamp_flush(self, vreg, vtmp, vlane):
        if not self.stamp: return
        A = self.A
        A("s_memrealtime s[98:99]"); A("s_waitcnt lgkmcnt(0)")
        A(f"v_writelane_b32 v{vreg}, s100, 62"); A(f"v_writelane_b32 v{vreg}, s98, 63")
        A(f"s_lshl_b32 s98, s2, 11")
        A(f"s_lshl_b32 s99, s{S_WAVE}, 8")
        A(f"s_add_u32 s98, s98, s99")
        A(f"s_add_u32 s98, s98, {WS_ST}")
        A(f"v_lshlrev_b32 v{vtmp}, 2, v{vlane}")
        A(f"buffer_store_dword v{vreg}, v{vtmp}, s[{SWS}:{SWS+3}], s98 offen")

    def poll(self, srd_, voff, soff, nlanes_mask, want, vtmp, cmp="eq"):
        A = self.A
        lab = A.newlabel("L_poll"); done = A.newlabel("L_polld")
        A(f"s_mov_b32 s96, {SPIN_MAX}")
        A(f"s_mov_b64 exec, {hex(nlanes_mask)}")
        A.label(lab)
        A(f"buffer_load_dword v{vtmp}, v{voff}, s[{srd_}:{srd_+3}], {soff} offen sc1")
        A("s_waitcnt vmcnt(0)")
        A(f"v_cmp_ne_u32 vcc, {want}, v{vtmp}")
        A("s_sub_u32 s96, s96, 1")
        A("s_cmp_eq_u32 s96, 0")
        A(f"s_cbranch_scc1 {done}")
        A("s_nop 2")
        A(f"s_cbranch_vccz {done}")
        A("s_sleep 1")
        A(f"s_branch {lab}")
        A.label(done)
        A("s_mov_b64 exec, -1")

    def prologue(self):
        A = self.A
        A("s_cmp_ge_u32 s2, 256")
        A("s_cbranch_scc1 L_end")
        A("s_load_dwordx16 s[16:31], s[0:1], 0")
        A("s_load_dwordx8 s[32:39], s[0:1], 64")
        if self.stamp:
            A(f"s_memtime s[{S_T0}:{S_T0+1}]")
            A(f"s_mov_b32 s{S_STI}, 0")
            A("s_memrealtime s[100:101]")
        A("v_lshrrev_b32 v1, 6, v0")
        A("v_and_b32 v0, 63, v0")
        A(f"v_readfirstlane_b32 s{S_WAVE}, v1")
        A("s_and_b32 s3, s2, 7")
        A("s_lshr_b32 s4, s2, 3")
        A("s_and_b32 s5, s3, 1")
        A("s_lshl_b32 s5, s5, 3")
        A("s_and_b32 s6, s4, 7")
        A(f"s_add_u32 s{S_RB}, s5, s6")
        A("s_lshr_b32 s5, s3, 1")
        A("s_lshl_b32 s5, s5, 2")
        A("s_lshr_b32 s6, s4, 3")
        A(f"s_add_u32 s{S_HP}, s5, s6")
        A("s_waitcnt lgkmcnt(0)")
        srd(A, SX, P_X, 2048 * 1024 * 2)
        srd(A, SW, P_W, 1024 * 3072 * 2)
        srd(A, SWS, P_WS, 32 << 20)
        srd(A, SDBG, P_DBG, 256)
        A(f"s_cmp_ge_u32 s{S_WAVE}, 4")
        A("s_cbranch_scc1 L_helper")

    def p1_compute(self):
        A = self.A
        FA, FB, VX, VW = 96, 116, 136, 140
        VL16 = 250
        VLANE = 251
        self.VL16, self.VLANE = VL16, VLANE
        A(f"v_mov_b32 v{VLANE}, v0")
        A(f"v_lshlrev_b32 v{VL16}, 4, v0")
        if self.stamp: A("v_mov_b32 v252, 0")
        A(f"s_and_b32 s{S_U}, s{S_WAVE}, 1")
        lab = A.newlabel("L_tag")
        A(f"s_lshl_b32 s3, s2, 3"); A(f"s_add_u32 s3, s3, s{S_WAVE}"); A("s_cmp_lg_u32 s3, 1"); A(f"s_cbranch_scc1 {lab}")
        A("s_memrealtime s[4:5]"); A("s_waitcnt lgkmcnt(0)")
        A("s_and_b32 s4, s4, 0x7ffffff0"); A("s_or_b32 s4, s4, 0x80000000")
        A("v_mov_b32 v141, 0"); A("v_mov_b32 v142, s4")
        A("s_mov_b64 exec, 1")
        A(f"buffer_store_dword v142, v141, s[{SDBG}:{SDBG+3}], 0 offen sc1")
        A("s_mov_b64 exec, -1")
        A.label(lab)
        xt = self.o.get("xtouch", 0)
        if xt:
            lab = A.newlabel("L_xt")
            A(f"s_cmp_ge_u32 s{S_WAVE}, 2"); A(f"s_cbranch_scc1 {lab}")
            A(f"s_lshl_b32 s3, s{S_RB}, 18"); A(f"s_lshl_b32 s4, s{S_HP}, 14"); A("s_add_u32 s3, s3, s4")
            A(f"s_lshl_b32 s4, s{S_WAVE}, 13"); A("s_add_u32 s3, s3, s4")
            A("v_lshlrev_b32 v141, 7, v0")
            A(f"buffer_load_dword v249, v141, s[{SX}:{SX+3}], s3 offen")
            A.label(lab)
            if xt >= 2:
                lab = A.newlabel("L_xt")
                A(f"s_cmp_eq_u32 s{S_WAVE}, 0"); A(f"s_cbranch_scc1 {lab}")
                A(f"s_mul_i32 s3, s2, 24576"); A(f"s_sub_u32 s4, s{S_WAVE}, 1"); A("s_lshl_b32 s4, s4, 13"); A("s_add_u32 s3, s3, s4")
                A("v_lshlrev_b32 v141, 7, v0")
                A(f"buffer_load_dword v249, v141, s[{SW}:{SW+3}], s3 offen")
                A.label(lab)
        A("v_and_b32 v141, 31, v0")
        A("v_lshrrev_b32 v142, 5, v0")
        A("v_bfe_u32 v143, v0, 1, 3")
        A("v_xor_b32 v143, v143, v142")
        A("v_lshlrev_b32 v143, 4, v143")
        A("v_lshlrev_b32 v141, 7, v141")
        A(f"s_lshr_b32 s3, s{S_WAVE}, 1")
        A("s_lshl_b32 s3, s3, 13")
        A("v_add_u32 v141, s3, v141")
        for j in range(4):
            A(f"v_xor_b32 v{VX+j}, {32*j}, v143")
            A(f"v_add_u32 v{VX+j}, v{VX+j}, v141")
        A("v_bfe_u32 v143, v0, 2, 2")
        A("v_lshl_add_u32 v143, v142, 3, v143")
        A("v_lshlrev_b32 v143, 7, v143")
        A("v_and_b32 v141, 3, v0")
        A("v_lshl_add_u32 v143, v141, 3, v143")
        A("v_bfe_u32 v141, v0, 4, 1")
        A("v_lshl_add_u32 v143, v141, 5, v143")
        A("v_bfe_u32 v141, v0, 3, 1")
        A(f"v_xor_b32 v141, s{S_U}, v141")
        A(f"v_lshl_add_u32 v{VW}, v141, 6, v143")
        for i in range(96): A(f"v_mov_b32 v{i}, 0")

        def reads(F, j):
            r = [f"ds_read_b128 {vr(F,4)}, v{VX+j}"]
            for seg in range(3):
                for r2 in range(2):
                    r.append(f"ds_read_b64_tr_b16 {vr(F+8+4*seg+2*r2,2)}, v{VW} offset:{16384+seg*8192+j*2048+r2*512}")
            r.append(f"ds_read_b128 {vr(F+4,4)}, v{VX+j} offset:4096")
            return r
        def mf(F):
            x0, x1, wq, wk, wv = F, F+4, F+8, F+12, F+16
            return [mfma32(0,wq,x0,0), mfma32(16,wk,x0,16), mfma32(32,x0,wv,32),
                    mfma32(48,wq,x1,48), mfma32(64,wk,x1,64), mfma32(80,x1,wv,80)]
        S_CNT, S_SLOT, S_D = S_TMP, S_TMP+1, S_TMP+2
        A(f"s_mov_b32 s{S_CNT}, 16")
        A(f"s_mov_b32 s{S_SLOT}, 0")
        A(f"s_mov_b32 s{S_D+1}, {-(G_NSLOT-1)*G_STAGE & 0xffffffff}")
        A(f"s_mov_b32 s{S_D+2}, {G_STAGE}")
        self.stampit(252)
        A("s_barrier")
        self.stampit(252)
        for r in reads(FA, 0): A(r)
        A.raw(".p2align 6")
        A.label("L_g1loop")
        def step(Fc, Fn, jn, kind, extra=None):
            m = mf(Fc); r = reads(Fn, jn)
            extra = extra or {}
            if kind in ("norm", "after"):
                pat = [2,2,1,1,1,1]; k = 0
                for i in range(6):
                    if kind == "norm" and i < 4: A("s_waitcnt lgkmcnt(5)")
                    A(m[i])
                    for _ in range(pat[i]): A(r[k]); k += 1
                    for x in extra.get(i, []): A(x)
            else:
                A("s_waitcnt lgkmcnt(5)"); A(m[0]); A(r[0]); A(r[1]); A(r[2])
                A("s_waitcnt lgkmcnt(6)"); A(m[1]); A(r[3]); A(r[4]); A(r[5])
                A("s_waitcnt lgkmcnt(7)"); A(m[2]); A(r[6]); A(r[7])
                A("s_waitcnt lgkmcnt(8)"); A(m[3])
                A(f"v_add_u32 v{VX+2}, s{S_D}, v{VX+2}"); A(f"v_add_u32 v{VX+3}, s{S_D}, v{VX+3}"); A(f"v_add_u32 v{VW}, s{S_D}, v{VW}")
                A(m[4])
                A(f"s_sub_u32 s{S_CNT}, s{S_CNT}, 1")
                A(m[5])
                A("s_waitcnt lgkmcnt(0)")
                if self.o.get("st1", 0): self.stampit(252)
                A("s_barrier")
                if self.o.get("st1", 0): self.stampit(252)
        slotadv = [f"s_add_u32 s{S_SLOT}, s{S_SLOT}, 1", f"s_cmp_eq_u32 s{S_SLOT}, {G_NSLOT}",
                   f"s_cselect_b32 s{S_D}, s{S_D+1}, s{S_D+2}", f"s_cselect_b32 s{S_SLOT}, 0, s{S_SLOT}"]
        step(FA, FB, 1, "norm", {3: slotadv[:2], 4: slotadv[2:], 5: [f"v_add_u32 v{VX}, s{S_D}, v{VX}"]})
        step(FB, FA, 2, "norm", {4: [f"v_add_u32 v{VX+1}, s{S_D}, v{VX+1}"]})
        step(FA, FB, 3, "bar")
        step(FB, FA, 0, "after", {4: [f"s_cmp_lg_u32 s{S_CNT}, 0"]})
        A("s_cbranch_scc1 L_g1loop")
        A("s_waitcnt lgkmcnt(0)")
        self.stampit(252)
        A(f"s_lshl_b32 s3, s{S_U}, 14")
        A(f"s_lshr_b32 s4, s{S_WAVE}, 1")
        A("s_lshl_b32 s4, s4, 13")
        A("s_add_u32 s3, s3, s4")
        A(f"v_add_u32 v141, s3, v{VL16}")
        A(f"s_lshl_b32 s5, s{S_HP}, 19"); A(f"s_lshl_b32 s6, s{S_RB}, 15"); A("s_add_u32 s5, s5, s6"); A("s_add_u32 s5, s5, s3")
        A(f"s_add_u32 s5, s5, {WS_KVA}"); A("s_add_u32 s6, s5, 4096")
        A(f"s_mov_b32 s3, {f32bits(QSCALE)}")
        A("s_nop 7")
        for t in range(2):
            b = 48 * t
            for blk in (1, 2):
                for i in range(8):
                    A(f"v_cvt_pk_bf16_f32 v{96+16*t+8*(blk-1)+i}, v{b+16*blk+2*i}, v{b+16*blk+2*i+1}")
            for f in range(4):
                A(f"buffer_store_dwordx4 {vr(96+16*t+4*f,4)}, v{VL16}, s[{SWS}:{SWS+3}], s{5+t} offen offset:{1024*f}")
            for f in range(4):
                A(f"ds_write_b128 v141, {vr(96+16*t+4*f,4)} offset:{4096*t+1024*f}")
        self.QA, self.QB = 200, 208
        for t in range(2):
            b = 48 * t
            for i in range(16): A(f"v_mul_f32 v{b+i}, s3, v{b+i}")
            for i in range(8): A(f"v_cvt_pk_bf16_f32 v{200+8*t+i}, v{b+2*i}, v{b+2*i+1}")
        A("s_waitcnt lgkmcnt(0)")
        A("s_barrier")
        self.read_tag(160)
        self.stampit(252)

    def p2_compute(self):
        A = self.A
        S = [0, 16]; O = [32, 48]; NM = [64, 80]; P = [96, 104]; KB = [112, 120]; VB = [128, 136]
        L = [144, 148]; ONES = 152; IDX = 156; VA = 157; VBASE = 158; Q = [self.QA, self.QB]
        self.r2 = dict(S=S, O=O, NM=NM, P=P, KB=KB, VB=VB, L=L, ONES=ONES, IDX=IDX, Q=Q)
        VL16 = self.VL16; VLANE = self.VLANE
        A(f"s_lshl_b32 s3, s{S_U}, 14")
        A(f"v_add_u32 v{VBASE}, s3, v{VL16}")
        A(f"v_mov_b32 v{VA}, v{VBASE}")
        def rdK(buf, kt, f): return f"ds_read_b128 {vr(KB[buf]+4*f,4)}, v{VA} offset:{kt*4096+f*1024}"
        def rdV(buf, kt, f): return f"ds_read_b128 {vr(VB[buf]+4*f,4)}, v{VA} offset:{kt*4096+2048+f*1024}"
        A(rdK(0,0,0)); A(rdK(0,0,1)); A(rdV(0,0,0)); A(rdV(0,0,1))
        A(f"v_and_b32 v160, 2, v{VLANE}")
        A(f"v_bfe_u32 v161, v{VLANE}, 2, 1")
        A("v_mov_b32 v162, 0x3f803f80")
        A("v_cmp_eq_u32 vcc, 0, v160")
        A("s_nop 1")
        A("v_cndmask_b32 v162, 0, v162, vcc")
        A("v_cmp_eq_u32 vcc, 0, v161")
        A("s_nop 1")
        A(f"v_cndmask_b32 v{ONES}, 0, v162, vcc")
        A(f"v_cndmask_b32 v{ONES+1}, 0, v162, vcc")
        A(f"v_sub_u32 v{ONES+2}, v162, v{ONES}")
        A(f"v_sub_u32 v{ONES+3}, v162, v{ONES}")
        A(f"v_and_b32 v160, 1, v{VLANE}")
        A("v_mov_b32 v161, 0x44444444")
        A("v_mov_b32 v163, 0xeeeeeeee")
        A("v_cmp_eq_u32 vcc, 0, v160")
        A("s_nop 1")
        A(f"v_cndmask_b32 v{IDX}, v163, v161, vcc")
        for q in range(2):
            for i in range(16): A(f"v_mov_b32 v{O[q]+i}, 0")
            for i in range(4): A(f"v_mov_b32 v{L[q]+i}, 0")
        A("s_waitcnt lgkmcnt(2)")
        for q in range(2):
            A(mfma32(S[q], KB[0], Q[q], None))
            A(mfma32(S[q], KB[0]+4, Q[q]+4, S[q]))
        A("s_nop 7")
        A("s_nop 3")
        self.rowmax_to_nm(S, NM)
        A.label("L_att_start")
        A("s_nop 1")
        A(mfma32(S[0], KB[0], Q[0], NM[0]))
        A(mfma32(S[0], KB[0]+4, Q[0]+4, S[0]))
        A("s_waitcnt lgkmcnt(0)")
        A("s_nop 7")
        A("s_nop 3")

        VT, VLA, VPA, VST = 159, 166, 167, 168
        A(f"v_mov_b32 v{VLA}, {L_LAND}")
        A(f"s_lshl_b32 s3, s{S_WAVE}, 8"); A(f"s_add_u32 s3, s3, {L_PROG}")
        A(f"v_lshl_add_u32 v{VPA}, v{VLANE}, 2, s3")
        def unit(q, t, kt_rd, do_qk=True, do_pv=True, do_rd=True, tail=None, chk=False):
            o = 1 - q
            s = S[q]; p = P[q]
            e = lambda i: f"v_exp_f32 v{s+i}, v{s+i}"
            c = lambda i: f"v_cvt_pk_bf16_f32 v{p+i}, v{s+2*i}, v{s+2*i+1}"
            if q == 0:
                kb = KB[t & 1]; vb = VB[(t - 1) & 1]
                rd = [rdK((t + 1) & 1, kt_rd, 0), rdK((t + 1) & 1, kt_rd, 1)]
            else:
                kb = KB[(t + 1) & 1]; vb = VB[t & 1]
                rd = [rdV((t + 1) & 1, kt_rd, 0), rdV((t + 1) & 1, kt_rd, 1)]
            M = [mfma32(S[o], kb, Q[o], NM[o]), mfma32(S[o], kb+4, Q[o]+4, S[o]),
                 mfma32(O[o], vb, P[o], O[o]), mfma32(O[o], vb+4, P[o]+4, O[o]),
                 f"v_smfmac_f32_16x16x64_bf16 {vr(L[o],4)}, {vr(ONES,4)}, {vr(P[o],8)}, v{IDX}"]
            g = [[e(0), e(1), e(2)], [c(0), e(3), e(4), e(5)], [c(1), e(6), e(7), c(2), e(8)],
                 [c(3), e(9), e(10), e(11), c(4)], [e(12), e(13), c(5), e(14), e(15), c(6), c(7)]]
            for i in range(5):
                on = do_qk if i < 2 else do_pv
                if on: A(M[i])
                if i < 2 and do_rd: A(rd[i])
                if i == 3 and chk: A(f"ds_read_b32 v{VT}, v{VLA}")
                if i == 4 and q == 0: A("s_waitcnt lgkmcnt(0)")
                if i == 4 and tail: tail()
                for x in g[i]: A(x)

        S_CNT, S_SL = S_TMP, S_TMP+1
        A(f"s_mov_b32 s{S_CNT}, 15")
        A(f"s_mov_b32 s{S_SL}, 0")
        A(f"s_mov_b32 s{S_TMP+20}, 0")
        def adv():
            A(f"s_add_u32 s{S_SL}, s{S_SL}, {KV_SLOT}")
            A(f"s_cmp_eq_u32 s{S_SL}, {KV_NSLOT*KV_SLOT}")
            A(f"s_cselect_b32 s{S_SL}, 0, s{S_SL}")
        def flagA():
            A(f"s_lshl_b32 s3, s{S_HP}, 4"); A(f"s_add_u32 s3, s3, s{S_RB}"); A("s_lshl_b32 s3, s3, 5"); A(f"s_add_u32 s3, s3, s{S_WAVE}")
            A("s_lshl_b32 s3, s3, 2"); A(f"s_add_u32 s3, s3, {WS_FA}")
            A(f"v_mov_b32 v164, 0"); A(f"v_mov_b32 v165, s{S_XCC}")
            A("s_waitcnt vmcnt(0)")
            A("s_mov_b64 exec, 1")
            A(f"buffer_store_dword v165, v164, s[{SWS}:{SWS+3}], s3 offen")
            A("s_mov_b64 exec, -1")
            A("s_nop 3")
        fa_at = self.o.get("fa_at", 0)
        if fa_at == 0: flagA()
        unit(0, 0, 1, do_pv=False)
        if fa_at == 1: flagA()
        unit(1, 0, 1)
        if fa_at == 2: flagA()
        unit(0, 1, 2); unit(1, 1, 2)
        S_NEED = S_TMP + 5
        A(f"s_mov_b32 s{S_NEED}, 0")
        def adv2():
            adv()
            A(f"s_add_u32 s{S_NEED}, s{S_NEED}, 1")
        def handshake(tag):
            A(f"v_add_u32 v{VA}, s{S_SL}, v{VBASE}")
            A(f"v_mov_b32 v{VST}, s{S_NEED}")
            A("s_waitcnt lgkmcnt(0)")
            if self.o.get("st2", 1): self.stampit(252)
            A(f"v_readfirstlane_b32 s3, v{VT}")
            A(f"ds_write_b32 v{VPA}, v{VST}")
            A(f"s_cmp_ge_u32 s3, s{S_NEED}")
            A(f"s_cbranch_scc0 L_hs_slow{tag}")
            A.label(f"L_hs_back{tag}")
            if self.o.get("st2", 1): self.stampit(252)
        self.hs = dict(VT=VT, VLA=VLA, S_NEED=S_NEED)
        unit(0, 2, 3); unit(1, 2, 3, tail=adv2, chk=True)
        handshake(0)
        A.raw(".p2align 6")
        A.label("L_attloop")
        unit(0, 3, 0); unit(1, 3, 0)
        unit(0, 4, 1); unit(1, 4, 1)
        unit(0, 5, 2); unit(1, 5, 2)
        unit(0, 6, 3); unit(1, 6, 3, tail=adv2, chk=True)
        handshake(1)
        A(f"s_cmp_lt_u32 s{S_NEED}, 16")
        A("s_cbranch_scc1 L_attloop")
        self.p3_operands()
        unit(0, 63, 0, do_rd=False); unit(1, 63, 0, do_qk=False, do_rd=False)
        A("s_nop 1")
        A(mfma32(O[1], VB[1], P[1], O[1]))
        A(mfma32(O[1], VB[1]+4, P[1]+4, O[1]))
        A(f"v_smfmac_f32_16x16x64_bf16 {vr(L[1],4)}, {vr(ONES,4)}, {vr(P[1],8)}, v{IDX}")
        self.stampit(252)
        A("s_nop 7")
        A("s_nop 7")
        A.label("L_att_fin")
        for q in range(2): A(f"v_add_f32 v{L[q]}, v{L[q]}, v{L[q]+1}")
        A(f"v_max_f32 v160, v{L[0]}, v{L[1]}")
        A(f"v_add_f32 v161, v{L[0]}, v{L[1]}")
        A("v_mov_b32 v162, 0x53800000")
        A("v_cmp_nlt_f32 vcc, v161, v162")
        A("s_nop 4")
        A("s_cbranch_vccnz L_fallback")
        A.label("L_att_ok")
        for q in range(2): A(f"v_rcp_f32 v{L[q]}, v{L[q]}")
        A("s_nop 0")
        for q in range(2):
            for i in range(16): A(f"v_mul_f32 v{O[q]+i}, v{L[q]}, v{O[q]+i}")
            for i in range(8): A(f"v_cvt_pk_bf16_f32 v{P[q]+i}, v{O[q]+2*i}, v{O[q]+2*i+1}")
        A(f"s_lshl_b32 s3, s{S_RB}, 2")
        A(f"s_and_b32 s4, s{S_WAVE}, 2")
        A("s_add_u32 s3, s3, s4")
        A("s_lshl_b32 s3, s3, 16")
        A(f"s_lshl_b32 s4, s{S_HP}, 1")
        A(f"s_add_u32 s4, s4, s{S_U}")
        A("s_lshl_b32 s4, s4, 11")
        A("s_add_u32 s3, s3, s4")
        A(f"s_add_u32 s3, s3, {WS_O}")
        A("s_add_u32 s4, s3, 65536")
        for q in range(2):
            so = "s3" if q == 0 else "s4"
            A(f"buffer_store_dwordx4 {vr(P[q],4)}, v{VL16}, s[{SWS}:{SWS+3}], {so} offen sc1")
            A(f"buffer_store_dwordx4 {vr(P[q]+4,4)}, v{VL16}, s[{SWS}:{SWS+3}], {so} offen offset:1024 sc1")

    def read_tag(self, v, wait=False):
        A = self.A
        A(f"v_mov_b32 v{v}, {L_TAG}"); A(f"ds_read_b32 v{v}, v{v}")
        A(f"s_getreg_b32 s{S_XCC}, hwreg(HW_REG_XCC_ID, 0, 4)")
        A("s_waitcnt lgkmcnt(0)")
        A(f"v_readfirstlane_b32 s{S_TAG}, v{v}")
        A("s_nop 1")
        A(f"s_or_b32 s{S_XCC}, s{S_XCC}, s{S_TAG}")

    def rowmax_to_nm(self, S, NM):
        A = self.A
        for q in range(2):
            s = S[q]; t = 160 + 2 * q
            A(f"v_max3_f32 v{t}, v{s}, v{s+1}, v{s+2}")
            for i in range(3, 15, 2): A(f"v_max3_f32 v{t}, v{t}, v{s+i}, v{s+i+1}")
            A(f"v_max_f32 v{t}, v{t}, v{s+15}")
            A(f"v_mov_b32 v{t+1}, v{t}")
        A("s_nop 1")
        for q in range(2):
            t = 160 + 2 * q
            A(f"v_permlane32_swap_b32 v{t}, v{t+1}")
        A("s_nop 1")
        for q in range(2):
            t = 160 + 2 * q
            A(f"v_max_f32 v{t}, v{t}, v{t+1}")
        for q in range(2):
            t = 160 + 2 * q
            for i in range(16): A(f"v_sub_f32 v{NM[q]+i}, 0, v{t}")

    def fallback(self):
        A = self.A; r = self.r2
        S, O, NM, P, KB, VB, L, ONES, IDX, Q = [r[k] for k in "S O NM P KB VB L ONES IDX Q".split()]
        VL16 = self.VL16
        for tag in (0, 1):
            h = self.hs
            A.label(f"L_hs_slow{tag}")
            A(f"s_mov_b32 s96, {SPIN_MAX*16}")
            A.label(f"L_hs_spin{tag}")
            A(f"ds_read_b32 v{h['VT']}, v{h['VLA']}")
            A("s_waitcnt lgkmcnt(0)")
            A(f"v_readfirstlane_b32 s3, v{h['VT']}")
            A("s_sub_u32 s96, s96, 1"); A("s_cmp_eq_u32 s96, 0"); A(f"s_cbranch_scc1 L_hs_back{tag}")
            A(f"s_cmp_ge_u32 s3, s{h['S_NEED']}")
            A(f"s_cbranch_scc1 L_hs_back{tag}")
            A(f"s_branch L_hs_spin{tag}")
        A.label("L_fallback")
        A(f"s_cmp_eq_u32 s{S_TMP+20}, 1")
        A("s_cbranch_scc1 L_att_ok")
        A(f"s_mov_b32 s{S_TMP+20}, 1")
        S_B, S_I, S_O = S_TMP+2, S_TMP+3, S_TMP+4
        A(f"s_lshl_b32 s5, s{S_HP}, 6"); A(f"s_add_u32 s5, s5, {WS_F1}")
        A(f"v_lshlrev_b32 v164, 2, v{self.VLANE}")
        self.poll_val(SWS, 164, "s5", 0xffff, f"s{S_TAG}", 165)
        A(f"s_lshl_b32 s{S_B}, s{S_HP}, 19")
        A(f"s_lshl_b32 s3, s{S_U}, 14")
        A(f"s_add_u32 s{S_B}, s{S_B}, s3")
        def toff():
            A(f"s_lshr_b32 s3, s{S_I}, 2")
            A("s_lshl_b32 s3, s3, 15")
            A(f"s_and_b32 s4, s{S_I}, 3")
            A("s_lshl_b32 s4, s4, 12")
            A("s_add_u32 s3, s3, s4")
            A(f"s_add_u32 s{S_O}, s3, s{S_B}")
        MX = [164, 165]
        A(f"v_mov_b32 v{MX[0]}, 0xff800000")
        A(f"v_mov_b32 v{MX[1]}, 0xff800000")
        A(f"s_mov_b32 s{S_I}, 0")
        A.label("L_fb1")
        toff()
        A(f"buffer_load_dwordx4 {vr(KB[0],4)}, v{VL16}, s[{SWS}:{SWS+3}], s{S_O} offen sc1")
        A(f"buffer_load_dwordx4 {vr(KB[0]+4,4)}, v{VL16}, s[{SWS}:{SWS+3}], s{S_O} offen offset:1024 sc1")
        A("s_waitcnt vmcnt(0)")
        for q in range(2):
            A(mfma32(S[q], KB[0], Q[q], None))
            A(mfma32(S[q], KB[0]+4, Q[q]+4, S[q]))
        A("s_nop 7"); A("s_nop 7")
        for q in range(2):
            for i in range(0, 16, 2): A(f"v_max3_f32 v{MX[q]}, v{MX[q]}, v{S[q]+i}, v{S[q]+i+1}")
        A(f"s_add_u32 s{S_I}, s{S_I}, 1")
        A(f"s_cmp_lt_u32 s{S_I}, 64")
        A("s_cbranch_scc1 L_fb1")
        for q in range(2):
            for i in range(16): A(f"v_mov_b32 v{S[q]+i}, v{MX[q]}")
        self.rowmax_to_nm(S, NM)
        for q in range(2):
            for i in range(16): A(f"v_mov_b32 v{O[q]+i}, 0")
            for i in range(4): A(f"v_mov_b32 v{L[q]+i}, 0")
        A(f"s_mov_b32 s{S_I}, 0")
        A.label("L_fb2")
        toff()
        A(f"buffer_load_dwordx4 {vr(KB[0],4)}, v{VL16}, s[{SWS}:{SWS+3}], s{S_O} offen sc1")
        A(f"buffer_load_dwordx4 {vr(KB[0]+4,4)}, v{VL16}, s[{SWS}:{SWS+3}], s{S_O} offen offset:1024 sc1")
        A(f"buffer_load_dwordx4 {vr(VB[0],4)}, v{VL16}, s[{SWS}:{SWS+3}], s{S_O} offen offset:2048 sc1")
        A(f"buffer_load_dwordx4 {vr(VB[0]+4,4)}, v{VL16}, s[{SWS}:{SWS+3}], s{S_O} offen offset:3072 sc1")
        A("s_waitcnt vmcnt(0)")
        for q in range(2):
            A(mfma32(S[q], KB[0], Q[q], NM[q]))
            A(mfma32(S[q], KB[0]+4, Q[q]+4, S[q]))
        A("s_nop 7"); A("s_nop 7")
        for q in range(2):
            for i in range(16): A(f"v_exp_f32 v{S[q]+i}, v{S[q]+i}")
            A("s_nop 0")
            for i in range(8): A(f"v_cvt_pk_bf16_f32 v{P[q]+i}, v{S[q]+2*i}, v{S[q]+2*i+1}")
        A("s_nop 1")
        for q in range(2):
            A(mfma32(O[q], VB[0], P[q], O[q]))
            A(mfma32(O[q], VB[0]+4, P[q]+4, O[q]))
            A(f"v_smfmac_f32_16x16x64_bf16 {vr(L[q],4)}, {vr(ONES,4)}, {vr(P[q],8)}, v{IDX}")
        A(f"s_add_u32 s{S_I}, s{S_I}, 1")
        A(f"s_cmp_lt_u32 s{S_I}, 64")
        A("s_nop 7"); A("s_nop 7")
        A("s_cbranch_scc1 L_fb2")
        A("s_branch L_att_fin")


    def vm_reset(self): self.vm = []
    def vm_add(self, tag, n=1): self.vm += [tag] * n
    def vm_wait(self, tag):
        idx = [i for i, t in enumerate(self.vm) if t == tag]
        if not idx: return
        n = len(self.vm) - 1 - idx[-1]
        self.A(f"s_waitcnt vmcnt({min(n,63)})")
        self.vm = self.vm[idx[-1]+1:]
    def vm_all(self):
        self.A("s_waitcnt vmcnt(0)"); self.vm = []

    def only(self, u):
        g = self
        class C:
            def __enter__(s_):
                s_.lab = g.A.newlabel("L_only")
                g.A(f"s_cmp_lg_u32 s{S_U}, {u}")
                g.A(f"s_cbranch_scc1 {s_.lab}")
            def __exit__(s_, *a): g.A.label(s_.lab)
        return C()

    def last_arriver(self, cnt_index, body, n=4):
        A = self.A
        lab = A.newlabel("L_last")
        A(f"v_mov_b32 v14, {L_CNT + 4*cnt_index}")
        A("v_mov_b32 v15, 1")
        A("s_mov_b64 exec, 1")
        A("ds_add_rtn_u32 v16, v14, v15")
        A("s_waitcnt lgkmcnt(0)")
        A("s_mov_b64 exec, -1")
        A("v_readfirstlane_b32 s3, v16")
        A("s_nop 1")
        A(f"s_cmp_lg_u32 s3, {n-1}")
        A(f"s_cbranch_scc1 {lab}")
        body()
        A.label(lab)

    def set_flag(self, soff_code):
        A = self.A
        soff_code()
        A("v_mov_b32 v14, 0")
        A(f"v_mov_b32 v15, s{S_TAG}")
        A("s_mov_b64 exec, 1")
        A(f"buffer_store_dword v15, v14, s[{SWS}:{SWS+3}], s3 offen sc1")
        A("s_mov_b64 exec, -1")

    def helper_p1(self):
        A = self.A
        AHEAD = self.o.get("ahead", 3)
        A.label("L_helper")
        A(f"s_sub_u32 s{S_U}, s{S_WAVE}, 4")
        if self.stamp: A("v_mov_b32 v252, 0")
        A("v_mov_b32 v251, v0")
        A("v_lshlrev_b32 v250, 4, v0")
        A("v_lshrrev_b32 v1, 3, v0")
        A("v_lshrrev_b32 v2, 4, v0")
        A("v_and_b32 v3, 7, v0")
        A("v_xor_b32 v4, v2, v3")
        A("v_lshlrev_b32 v4, 4, v4")
        A("v_lshl_add_u32 v10, v1, 11, v4")
        A("v_xor_b32 v11, 64, v10")
        A("v_and_b32 v2, 1, v2")
        A("v_lshlrev_b32 v2, 2, v2")
        A("v_xor_b32 v2, v2, v3")
        A("v_lshlrev_b32 v13, 4, v2")
        A("s_movk_i32 s3, 6144")
        A("v_mul_lo_u32 v5, v1, s3")
        A("v_add_u32 v12, v5, v13")
        S_XO, S_WO, S_K, S_A, S_B = S_TMP, S_TMP+1, S_TMP+2, S_TMP+3, S_TMP+4
        A(f"s_lshl_b32 s{S_XO}, s{S_RB}, 18")
        A(f"s_lshl_b32 s3, s{S_U}, 16")
        A(f"s_add_u32 s{S_XO}, s{S_XO}, s3")
        A(f"s_mul_i32 s{S_WO}, s{S_U}, {16*6144}")
        A(f"s_lshl_b32 s3, s{S_HP}, 7")
        A(f"s_add_u32 s{S_WO}, s{S_WO}, s3")
        S_CLS = S_TMP + 5
        S_TB = S_TMP + 8
        if self.rot == 4:
            tabs = []
            for c in range(4):
                seq = [c]
                for p in range(4):
                    fol = [4*p + k for k in range(4) if k != c]
                    slots = list(fol)
                    if p < 3: slots.insert(c, 4*(p+1) + c)
                    seq += slots
                assert sorted(seq) == list(range(16)), seq
                tabs.append(sum(v << (4*i) for i, v in enumerate(seq)))
            A("s_lshr_b32 s4, s2, 3"); A("s_lshr_b32 s5, s4, 3"); A("s_add_u32 s4, s4, s5"); A("s_and_b32 s4, s4, 3")
            A(f"s_mov_b32 s{S_CLS}, s4")
            A(f"s_mov_b32 s{S_TB}, {hex(tabs[0] & 0xffffffff)}"); A(f"s_mov_b32 s{S_TB+1}, {hex(tabs[0] >> 32)}")
            for c in range(1, 4):
                A(f"s_cmp_eq_u32 s4, {c}")
                A(f"s_cselect_b32 s{S_TB}, {hex(tabs[c] & 0xffffffff)}, s{S_TB}"); A(f"s_cselect_b32 s{S_TB+1}, {hex(tabs[c] >> 32)}, s{S_TB+1}")
        elif self.rot == 0:
            A(f"s_mov_b32 s{S_TB}, 0x76543210"); A(f"s_mov_b32 s{S_TB+1}, 0xfedcba98")
        def kst(dst, s_):
            A(f"s_bfe_u32 s{dst}, s{S_TB + (s_ >> 3)}, {hex((4 << 16) | (4 * (s_ & 7)))}")
        if self.rot in (0, 4): pass
        elif self.rot == 2:
            A("s_lshr_b32 s4, s2, 3")
            A("s_and_b32 s3, s4, 7"); A("s_lshl_b32 s3, s3, 1")
            A("s_lshr_b32 s4, s4, 3"); A("s_lshl_b32 s4, s4, 2")
            A("s_add_u32 s3, s3, s4"); A(f"s_and_b32 s{S_K}, s3, 15")
        if self.rot == 2:
            A(f"s_mov_b32 s6, 0x76543210"); A(f"s_mov_b32 s7, 0xfedcba98")
            A(f"s_lshl_b32 s3, s{S_K}, 2"); A(f"s_lshr_b64 s[{S_TB}:{S_TB+1}], s[6:7], s3")
            A("s_sub_u32 s3, 64, s3"); A("s_lshl_b64 s[6:7], s[6:7], s3")
            A(f"s_cmp_eq_u32 s{S_K}, 0"); A("s_cselect_b64 s[6:7], 0, s[6:7]")
            A(f"s_or_b64 s[{S_TB}:{S_TB+1}], s[{S_TB}:{S_TB+1}], s[6:7]")
        self.vm_reset()
        def issue(s):
            slot = (s % G_NSLOT) * G_STAGE
            kst(S_K, s)
            A(f"s_lshl_b32 s{S_A}, s{S_U}, 12")
            A(f"s_add_u32 s{S_A}, s{S_A}, {slot}")
            A(f"s_lshl_b32 s{S_B}, s{S_K}, 7")
            A(f"s_add_u32 s{S_B}, s{S_B}, s{S_XO}")
            for i in range(4):
                A(f"s_mov_b32 m0, s{S_A}")
                A(f"s_add_u32 s{S_A}, s{S_A}, 1024")
                A(f"buffer_load_dwordx4 v{10+(i&1)}, s[{SX}:{SX+3}], s{S_B} offen lds")
                if i < 3: A(f"s_add_u32 s{S_B}, s{S_B}, 16384")
            A(f"s_lshl_b32 s{S_A}, s{S_U}, 11")
            A(f"s_add_u32 s{S_A}, s{S_A}, {slot+16384}")
            A(f"s_mul_i32 s{S_B}, s{S_K}, {64*6144}")
            A(f"s_add_u32 s{S_B}, s{S_B}, s{S_WO}")
            for q in range(2):
                for seg in range(3):
                    A(f"s_mov_b32 m0, s{S_A}")
                    A(f"s_add_u32 s{S_A}, s{S_A}, {8192 if seg < 2 else (1024-16384) & 0xffffffff}")
                    A(f"buffer_load_dwordx4 v12, s[{SW}:{SW+3}], s{S_B} offen lds")
                    if not (q == 1 and seg == 2):
                        A(f"s_add_u32 s{S_B}, s{S_B}, {2048 if seg < 2 else 8*6144-4096}")
            self.vm_add(("g", s), 10)
        with self.only(3):
            srd(A, SA, P_WR, 2048); srd(A, SB, P_GW, 2048)
            for i, sr_ in enumerate((SA, SA, SB, SB)):
                A(f"s_mov_b32 m0, {L_WR + (i >> 1) * 2048}"); A("s_nop 0")
                A(f"buffer_load_dwordx4 v250, s[{sr_}:{sr_+3}], 0 offen offset:{(i & 1) * 1024} lds")
            A(f"s_and_b32 s3, s{S_HP}, 1"); A("s_lshl_b32 s3, s3, 6")
            A("v_xor_b32 v17, s3, v4")
            A(f"v_add_u32 v17, {L_WR}, v17")
            A(f"s_lshl_b32 s3, s{S_HP}, 10")
            A("v_add_u32 v18, s3, v250")
            A("v_mov_b32 v24, 0"); A("v_mov_b32 v25, 0")
        self.stampit(252)
        issue(0); issue(1)
        self.vm_wait(("g", 0))
        self.stampit(252)
        A("s_barrier")
        nxt = 2
        for s in range(16):
            while nxt < 16 and nxt < s + AHEAD and nxt < s + G_NSLOT:
                issue(nxt); nxt += 1
                if nxt == 16:
                    A("v_mov_b32 v27, 0")
                    A(f"buffer_load_dword v26, v27, s[{SDBG}:{SDBG+3}], 0 offen sc1")
                    self.vm_add("tag", 1)
                    A(f"s_lshl_b32 s3, s{S_HP}, 4"); A(f"s_and_b32 s4, s{S_RB}, 8"); A("s_add_u32 s3, s3, s4"); A("s_lshl_b32 s3, s3, 7"); A(f"s_add_u32 s3, s3, {WS_FA}")
                    A("v_and_b32 v9, 7, v251"); A("v_lshlrev_b32 v9, 7, v9")
                    A(f"buffer_load_dword v8, v9, s[{SWS}:{SWS+3}], s3 offen")
                    self.vm_add("touch", 1)
                    A(f"s_lshl_b32 s3, s{S_HP}, 19"); A(f"s_lshl_b32 s4, s{S_RB}, 15"); A("s_add_u32 s3, s3, s4")
                    A(f"s_lshl_b32 s4, s{S_U}, 13"); A("s_add_u32 s3, s3, s4"); A(f"s_add_u32 s3, s3, {WS_KVA}")
                    A("v_lshlrev_b32 v9, 7, v251")
                    if self.o.get("tsplit", 1): A("s_mov_b32 exec_hi, 0")
                    A(f"buffer_load_dword v8, v9, s[{SWS}:{SWS+3}], s3 offen")
                    A("s_mov_b64 exec, -1")
                    self.vm_add("touch", 1)
                if self.o.get("tsplit", 1) and self.rot == 4 and 10 <= nxt <= 13:
                    lab = A.newlabel("L_t")
                    A(f"s_cmp_lg_u32 s{S_CLS}, {nxt-10}"); A(f"s_cbranch_scc1 {lab}")
                    A(f"s_lshl_b32 s3, s{S_HP}, 19"); A(f"s_lshl_b32 s4, s{S_RB}, 15"); A("s_add_u32 s3, s3, s4")
                    A(f"s_lshl_b32 s4, s{S_U}, 13"); A("s_add_u32 s3, s3, s4"); A(f"s_add_u32 s3, s3, {WS_KVA}")
                    A("v_lshlrev_b32 v9, 7, v251")
                    A("s_mov_b32 exec_lo, 0")
                    A(f"buffer_load_dword v8, v9, s[{SWS}:{SWS+3}], s3 offen")
                    A("s_mov_b64 exec, -1")
                    A.label(lab)
            with self.only(3):
                kst(4, s); A("s_lshl_b32 s4, s4, 7")
                A(f"v_add_u32 v19, {(s % G_NSLOT) * G_STAGE}, v18"); A("v_add_u32 v28, s4, v17")
                A("ds_read_b128 v[20:23], v19"); A("ds_read_b128 v[64:67], v28"); A("ds_read_b128 v[68:71], v28 offset:2048")
                A("s_waitcnt lgkmcnt(0)")
                for i in range(4):
                    A(f"v_dot2c_f32_bf16 v24, v{20+i}, v{64+i}")
                    A(f"v_dot2c_f32_bf16 v25, v{20+i}, v{68+i}")
            if s == 15:
                with self.only(0):
                    lab = A.newlabel("L_tagok")
                    save = list(self.vm)
                    self.vm_wait("tag")
                    A("v_readfirstlane_b32 s3, v26")
                    A("s_nop 1")
                    A("s_cmp_lg_u32 s3, 0"); A(f"s_cbranch_scc1 {lab}")
                    self.poll_val(SDBG, 27, "0", 1, 0, 26, ne=True)
                    A.label(lab)
                    A(f"v_mov_b32 v14, {L_TAG}"); A("s_mov_b64 exec, 1"); A("ds_write_b32 v14, v26"); A("s_mov_b64 exec, -1")
                    A("s_waitcnt lgkmcnt(0)")
                    self.vm = save
            if s + 1 < 16: self.vm_wait(("g", s + 1))
            if self.o.get("st1", 0): self.stampit(252)
            A("s_barrier")
        with self.only(0):
            A(f"v_add_u32 v14, {L_CNT}, v250")
            for i in range(4): A(f"v_mov_b32 v{20+i}, 0")
            A("ds_write_b128 v14, v[20:23]"); A("ds_write_b128 v14, v[20:23] offset:1024")
            A("s_waitcnt lgkmcnt(0)")
        A("s_barrier")
        self.read_tag(14)
        self.stampit(252)

    def helper_p2(self):
        A = self.A
        S_KVB = S_TMP
        self.vm_reset()
        A(f"s_lshl_b32 s{S_KVB}, s{S_HP}, 19")
        for u in range(1, 4):
            A(f"s_cmp_eq_u32 s{S_U}, {u}"); A(f"s_cbranch_scc1 L_h2_{u}")
        for u in range(4):
            if u: A.label(f"L_h2_{u}")
            self.helper_p2_wave(u)
            A("s_branch L_p3")

    def rg_finalize(self):
        A = self.A
        for v in (24, 25):
            A(f"s_nop 1\nv_add_f32_dpp v{v}, v{v}, v{v} quad_perm:[1,0,3,2] row_mask:0xf bank_mask:0xf")
            A(f"s_nop 1\nv_add_f32_dpp v{v}, v{v}, v{v} quad_perm:[2,3,0,1] row_mask:0xf bank_mask:0xf")
            A(f"s_nop 1\nv_add_f32_dpp v{v}, v{v}, v{v} row_half_mirror row_mask:0xf bank_mask:0xf")
        A("v_cvt_pk_bf16_f32 v26, v25, v25")
        A("v_lshlrev_b32 v26, 16, v26")
        A(f"v_mul_f32 v26, {hex(f32bits(-LOG2E))}, v26")
        A("v_exp_f32 v26, v26")
        A("s_nop 0")
        A("v_add_f32 v26, 1.0, v26")
        A("v_rcp_f32 v26, v26")
        A("s_nop 0")
        A("v_cvt_pk_bf16_f32 v26, v26, v26")
        A("v_lshlrev_b32 v26, 16, v26")
        A(f"s_lshl_b32 s3, s{S_RB}, 7"); A(f"s_lshl_b32 s4, s{S_HP}, 3"); A("s_add_u32 s3, s3, s4")
        A("v_lshrrev_b32 v27, 3, v251")
        A("v_add_u32 v27, s3, v27")
        A("v_lshlrev_b32 v14, 2, v27")
        A("s_mov_b32 exec_lo, 0x01010101\ns_mov_b32 exec_hi, 0x01010101")
        A(f"s_mov_b32 s5, {WS_G}")
        A(f"buffer_store_dword v26, v14, s[{SWS}:{SWS+3}], s5 offen sc1")
        A("s_mov_b64 exec, -1")
        A("v_cvt_pk_bf16_f32 v15, v24, v24")
        A("v_lshlrev_b32 v15, 16, v15")
        A("v_ashrrev_i32 v16, 31, v15")
        A("v_or_b32 v16, 0x80000000, v16")
        A("v_and_b32 v16, 0xffff0000, v16")
        A("v_xor_b32 v15, v15, v16")
        A("v_sub_u32 v27, 2047, v27")
        A("v_or_b32 v15, v15, v27")
        A("s_nop 1")
        A("v_readlane_b32 s3, v15, 0")
        for i in range(1, 8):
            A(f"v_readlane_b32 s4, v15, {8*i}")
            A("s_nop 1")
            A("s_max_u32 s3, s3, s4")
        A(f"s_mov_b32 s{S_KEY}, s3")
        self.vm_add("g", 1)
    def rg_count(self):
        A = self.A
        self.vm_wait("g")
        A("s_lshl_b32 s3, s2, 3"); A(f"s_add_u32 s3, s3, {WS_KEYS}")
        A("v_mov_b32 v14, 0"); A(f"v_mov_b32 v16, s{S_KEY}"); A(f"v_mov_b32 v17, s{S_TAG}")
        A("s_mov_b64 exec, 1")
        A(f"buffer_store_dwordx2 v[16:17], v14, s[{SWS}:{SWS+3}], s3 offen sc1")
        A("s_mov_b64 exec, -1")
        self.vm_add("key")

    def lds_spin_ge(self, addr, stride, n, want, sleep=2, bound=None):
        A = self.A
        lab = A.newlabel("L_spin"); done = A.newlabel("L_spind")
        A(f"v_min_u32 v14, {n-1}, v251")
        if stride > 1: A(f"v_mul_u32_u24 v14, {stride}, v14")
        A(f"v_add_u32 v14, {addr}, v14")
        A(f"s_mov_b32 s96, {bound or SPIN_MAX*16}")
        A.label(lab)
        A("ds_read_b32 v16, v14")
        A("s_waitcnt lgkmcnt(0)")
        A(f"v_cmp_gt_u32 vcc, {want}, v16")
        A("s_sub_u32 s96, s96, 1"); A("s_cmp_eq_u32 s96, 0"); A(f"s_cbranch_scc1 {done}")
        A("s_nop 2")
        A(f"s_cbranch_vccz {done}")
        A(f"s_sleep {sleep}")
        A(f"s_branch {lab}")
        A.label(done)

    def wo_setup(self):
        A = self.A
        srd(A, SA, P_WO, 1024 * 1024 * 2)
        A("v_lshrrev_b32 v19, 3, v251")
        A("v_lshl_add_u32 v19, v19, 11, v13")
    def issue_wo(self, q):
        A = self.A; S_B = S_TMP + 3
        base = q * 32768 if q < 3 else L_R2
        A("s_lshr_b32 s3, s2, 3"); A("s_and_b32 s3, s3, 15"); A("s_lshl_b32 s3, s3, 7")
        A(f"s_add_u32 s{S_B}, s3, {q*256*2048}")
        for i in range(32):
            A(f"s_mov_b32 m0, {base + i*1024}")
            if i: A(f"s_add_u32 s{S_B}, s{S_B}, 16384")
            else: A("s_nop 0")
            A(f"buffer_load_dwordx4 v19, s[{SA}:{SA+3}], s{S_B} offen lds")

    def helper_p2_wave(self, u):
        if u == 0: self.kv_loader()
        elif u == 1: self.b_wave()
        else: self.moe_wave(u - 2)

    def kv_loader(self):
        A = self.A
        S_KVB, S_B, S_MODE = S_TMP, S_TMP+3, S_TMP+4
        def landed(v):
            A(f"v_mov_b32 v14, {L_LAND}"); A(f"v_mov_b32 v15, {v}")
            A("ds_write_b32 v14, v15")
        A("v_lshrrev_b32 v17, 3, v251"); A(f"v_add_u32 v17, s{S_RB}, v17"); A("v_and_b32 v17, 7, v17")
        A(f"s_and_b32 s4, s{S_RB}, 8"); A(f"s_lshl_b32 s5, s{S_HP}, 4"); A("s_add_u32 s4, s4, s5")
        A("v_add_u32 v17, s4, v17")
        A("v_and_b32 v18, 3, v251"); A("v_lshlrev_b32 v18, 2, v18"); A("v_lshl_add_u32 v20, v17, 7, v18"); A(f"v_add_u32 v20, {WS_FA}, v20")
        A("v_lshlrev_b32 v17, 2, v17"); A(f"v_add_u32 v17, {WS_F1}, v17")
        A("v_and_b32 v19, 4, v251"); A("v_cmp_eq_u32 vcc, 0, v19")
        A(f"v_mov_b32 v19, s{S_TAG}"); A(f"v_mov_b32 v16, s{S_XCC}")
        A("v_cndmask_b32 v21, v17, v20, vcc"); A("v_cndmask_b32 v22, v19, v16, vcc")
        A(f"s_mov_b64 s[{S_MODE}:{S_MODE+1}], 0")
        def poll_block(s_):
            lab = A.newlabel("L_poll"); done = A.newlabel("L_polld")
            A(f"s_bitcmp1_b64 s[{S_MODE}:{S_MODE+1}], {8*s_}"); A(f"s_cbranch_scc1 {done}")
            A(f"s_mov_b32 s96, {SPIN_MAX}")
            A("s_mov_b32 exec_lo, 0x0f0f0f00"); A("s_mov_b32 exec_hi, 0x0f0f0f0f")
            A.label(lab)
            A(f"buffer_load_dword v16, v21, s[{SWS}:{SWS+3}], 0 offen sc1")
            A("s_waitcnt vmcnt(0)")
            A("v_cmp_eq_u32 vcc, v22, v16")
            A("s_sub_u32 s96, s96, 1"); A("s_nop 2")
            A("s_lshr_b64 s[4:5], vcc, 1"); A("s_and_b64 s[4:5], s[4:5], vcc"); A("s_lshr_b64 s[6:7], s[4:5], 2"); A(f"s_and_b64 s[{S_MODE}:{S_MODE+1}], s[4:5], s[6:7]")
            A(f"s_bitcmp1_b64 s[{S_MODE}:{S_MODE+1}], {8*s_}"); A(f"s_cbranch_scc1 {done}")
            A(f"s_bitcmp1_b64 vcc, {8*s_+4}"); A(f"s_cbranch_scc1 {done}")
            A("s_cmp_eq_u32 s96, 0"); A(f"s_cbranch_scc1 {done}")
            A(f"s_cmp_lt_u32 s96, {SPIN_MAX-8}")
            A("s_cselect_b32 exec_lo, 0x1f1f1f00, exec_lo"); A("s_cselect_b32 exec_hi, 0x1f1f1f1f, exec_hi")
            A("s_sleep 1")
            A(f"s_branch {lab}")
            A.label(done)
            A("s_mov_b64 exec, -1")
        for s in range(1, 16):
            if s >= 3:
                A("s_waitcnt vmcnt(0)"); landed(s - 1)
                if s in (8, 12):
                    g4 = 0 if s < 12 else 4
                    A(f"s_lshl_b32 s5, s{S_HP}, 4"); A(f"s_and_b32 s4, s{S_RB}, 8"); A("s_xor_b32 s4, s4, 8"); A("s_add_u32 s5, s5, s4")
                    A("s_lshl_b32 s5, s5, 2"); A(f"s_add_u32 s5, s5, {WS_F1 + 4*g4}")
                    A("v_lshlrev_b32 v14, 2, v251")
                    self.poll_val(SWS, 14, "s5", 0xf, f"s{S_TAG}", 16, sleep=4)
                    if self.o.get("rtouch", 1):
                        A(f"s_add_u32 s3, s{S_RB}, {s}"); A("s_and_b32 s3, s3, 3"); A(f"s_and_b32 s4, s{S_RB}, 8"); A(f"s_xor_b32 s4, s4, {8 + g4}"); A("s_or_b32 s3, s3, s4")
                        A("s_lshl_b32 s3, s3, 15"); A(f"s_add_u32 s3, s3, s{S_KVB}")
                        A("v_lshlrev_b32 v14, 7, v251")
                        for i in range(4):
                            A(f"buffer_load_dword v16, v14, s[{SWS}:{SWS+3}], s3 offen sc1"); A("s_add_u32 s3, s3, 8192")
                self.lds_spin_ge(L_PROG, 256, 4, s - 2)
                if s == 3: self.lds_spin_ge(L_CNT + 16, 1, 1, 1)
            if s <= 7:
                poll_block(s); bit = 8 * s
                A(f"s_add_u32 s3, s{S_RB}, {s}"); A("s_and_b32 s3, s3, 7"); A(f"s_and_b32 s4, s{S_RB}, 8"); A(f"s_or_b32 s{S_B}, s3, s4")
                A(f"s_bitcmp1_b64 s[{S_MODE}:{S_MODE+1}], {bit}")
                A(f"s_cselect_b32 s6, {WS_KVA}, 0")
            else:
                g4 = 0 if s < 12 else 4
                A(f"s_add_u32 s3, s{S_RB}, {s}"); A("s_and_b32 s3, s3, 3"); A(f"s_and_b32 s4, s{S_RB}, 8"); A(f"s_xor_b32 s4, s4, {8 + g4}"); A(f"s_or_b32 s{S_B}, s3, s4")
                A("s_mov_b32 s6, 0")
            self.stampit(252)
            A(f"s_lshl_b32 s{S_B}, s{S_B}, 15"); A(f"s_add_u32 s{S_B}, s{S_B}, s{S_KVB}"); A(f"s_add_u32 s{S_B}, s{S_B}, s6")
            for hb in range(8):
                A(f"s_mov_b32 m0, {(s % KV_NSLOT) * KV_SLOT + hb * 4096}")
                if hb: A(f"s_add_u32 s{S_B}, s{S_B}, 4096")
                else: A("s_nop 0")
                for i in range(4):
                    A(f"buffer_load_dwordx4 v250, s[{SWS}:{SWS+3}], s{S_B} offen offset:{1024*i} sc1 lds")
            if s == 1:
                A("s_waitcnt vmcnt(0)"); landed(1)
            self.stampit(252)
        if self.moe: self.lds_spin_ge(L_CNT + 20, 1, 1, 1)
        A("s_waitcnt vmcnt(0)"); landed(16)
        self.p3_operands()
        self.wo_setup()
        for q, need in ((1, 14), (2, 15), (0, 16)):
            self.lds_spin_ge(L_PROG, 256, 4, need)
            self.issue_wo(q)
            self.stampit(252)

    def b_wave(self):
        A = self.A
        S_KVB, S_BS = S_TMP, S_TMP + 9
        BR = 64
        for i in range(32):
            if i in (12, 24): A("s_waitcnt lgkmcnt(4)")
            A(f"ds_read_b128 {vr(BR+4*i,4)}, v250 offset:{1024*i}")
        A(f"s_lshl_b32 s{S_BS}, s{S_RB}, 15"); A(f"s_add_u32 s{S_BS}, s{S_BS}, s{S_KVB}")
        A(f"v_mov_b32 v14, {L_CNT + 16}"); A("v_mov_b32 v15, 1")
        A("s_waitcnt lgkmcnt(0)")
        A("ds_write_b32 v14, v15")
        A(f"s_bfe_u32 s5, s{S_RB}, 0x20001"); A("s_add_u32 s5, s5, 2"); A("s_lshl_b32 s6, s5, 3")
        self.lds_spin_ge(L_LAND, 1, 1, "s5", 4, bound="s6")
        self.stampit(252)
        for i in range(32):
            A(f"buffer_store_dwordx4 {vr(BR+4*i,4)}, v250, s[{SWS}:{SWS+3}], s{S_BS} offen offset:{1024*(i&3)} sc1")
            if (i & 3) == 3: A(f"s_add_u32 s{S_BS}, s{S_BS}, 4096")
        A("s_waitcnt vmcnt(0)")
        def c():
            A(f"s_lshl_b32 s3, s{S_HP}, 4"); A(f"s_add_u32 s3, s3, s{S_RB}"); A("s_lshl_b32 s3, s3, 2"); A(f"s_add_u32 s3, s3, {WS_F1}")
        self.set_flag(c)
        self.stampit(252)
        self.wo_setup()
        if self.moe: self.lds_spin_ge(L_CNT + 8, 1, 1, 2, 8)
        self.lds_spin_ge(L_LAND, 1, 1, self.o.get("wo3_at", 13), 8)
        self.issue_wo(3)
        self.stampit(252)
        self.p3_operands()

    def moe_wave(self, m):
        A = self.A
        self.m = m
        self.vm_reset()
        if m == 1:
            self.rg_finalize(); self.rg_count()
        if self.moe:
            steps = self.moe_steps()
            for k in ("gate_issue", "key", "gate_mma", "up_mma", "h", "down_mma"):
                steps[k](); self.stampit(252)
        self.lds_spin_ge(L_LAND, 1, 1, 14, 8)
        self.p3_operands()

    def poll_val(self, srd_, voff, soff, mask, want, vtmp, ne=False, sleep=1):
        A = self.A
        lab = A.newlabel("L_poll"); done = A.newlabel("L_polld")
        A(f"s_mov_b32 s96, {SPIN_MAX}")
        A(f"s_mov_b32 s97, {want}")
        A(f"s_mov_b64 exec, {hex(mask)}")
        A.label(lab)
        if soff.startswith("s"):
            A(f"buffer_load_dword v{vtmp}, v{voff}, s[{srd_}:{srd_+3}], {soff} offen sc1")
        else:
            A(f"buffer_load_dword v{vtmp}, v{voff}, s[{srd_}:{srd_+3}], 0 offen offset:{soff} sc1")
        A("s_waitcnt vmcnt(0)")
        A(f"v_cmp_{'eq' if ne else 'ne'}_u32 vcc, s97, v{vtmp}")
        A("s_sub_u32 s96, s96, 1")
        A("s_cmp_eq_u32 s96, 0")
        A(f"s_cbranch_scc1 {done}")
        A("s_nop 2")
        A(f"s_cbranch_vccz {done}")
        A(f"s_sleep {sleep}")
        A(f"s_branch {lab}")
        A.label(done)
        A("s_mov_b64 exec, -1")
        self.vm = []

    def get_key(self):
        A = self.A
        lab = A.newlabel("L_poll"); done = A.newlabel("L_polld")
        A(f"s_mov_b32 s96, {SPIN_MAX}")
        A(f"s_mov_b32 s5, {WS_KEYS}")
        A.label(lab)
        A(f"buffer_load_dwordx4 v[20:23], v250, s[{SWS}:{SWS+3}], s5 offen sc1")
        A(f"buffer_load_dwordx4 v[24:27], v250, s[{SWS}:{SWS+3}], s5 offen offset:1024 sc1")
        A("s_waitcnt vmcnt(0)")
        for i, v in enumerate((21, 23, 25, 27)): A(f"v_xor_b32 v{28+i}, s{S_TAG}, v{v}")
        A("v_or3_b32 v28, v28, v29, v30"); A("v_or_b32 v28, v28, v31")
        A("v_cmp_ne_u32 vcc, 0, v28")
        A("s_sub_u32 s96, s96, 1"); A("s_cmp_eq_u32 s96, 0"); A(f"s_cbranch_scc1 {done}")
        A("s_nop 2")
        A(f"s_cbranch_vccz {done}")
        A("s_sleep 16")
        A(f"s_branch {lab}")
        A.label(done)
        self.vm = []
        self.key_reduce(20, 16)

    def key_reduce(self, v, t):
        A = self.A
        A(f"v_max_u32 v{t}, v{v}, v{v+2}"); A(f"v_max3_u32 v{t}, v{t}, v{v+4}, v{v+6}")
        for d in ("quad_perm:[1,0,3,2]", "quad_perm:[2,3,0,1]", "row_half_mirror", "row_mirror"):
            A("s_nop 1"); A(f"v_max_u32_dpp v{t}, v{t}, v{t} {d} row_mask:0xf bank_mask:0xf")
        A("s_nop 1")
        A(f"v_readlane_b32 s{S_KEY}, v{t}, 0")
        for l in (16, 32, 48):
            A(f"v_readlane_b32 s3, v{t}, {l}"); A("s_nop 1"); A(f"s_max_u32 s{S_KEY}, s{S_KEY}, s3")
        A(f"s_and_b32 s3, s{S_KEY}, 2047")
        A(f"s_sub_u32 s{S_SEL}, 2047, s3")

    def moe_dma(self, srdreg, soff_sgpr, rowstride, vreg, nst):
        A = self.A
        for i in range(4 * nst):
            A(f"s_mov_b32 m0, {L_R2 + self.m*16384 + i*1024}")
            if i: A(f"s_add_u32 s{soff_sgpr}, s{soff_sgpr}, {8*rowstride}")
            else: A("s_nop 0")
            A(f"buffer_load_dwordx4 v{vreg}, s[{srdreg}:{srdreg+3}], s{soff_sgpr} offen lds")

    def moe_mma(self, XF, ACC, res, nst):
        A = self.A
        BF = 96
        A("v_lshrrev_b32 v14, 2, v251"); A("v_lshlrev_b32 v14, 7, v14")
        A("v_and_b32 v15, 3, v251"); A("v_lshl_add_u32 v14, v15, 3, v14")
        A(f"v_add_u32 v14, {L_R2 + self.m*16384}, v14")
        for st in range(nst):
            for c in range(4):
                b = BF + 16 * st + 4 * c
                A(f"ds_read_b64_tr_b16 {vr(b,2)}, v14 offset:{st*4096 + c*32}")
                A(f"ds_read_b64_tr_b16 {vr(b+2,2)}, v14 offset:{st*4096 + 2048 + c*32}")
            A("s_waitcnt lgkmcnt(0)")
        for st in range(nst):
            for c in range(4):
                A(mfma16(ACC + 4*c, XF + 4*st, BF + 16*st + 4*c, None if st == 0 else ACC + 4*c))
        A("v_lshrrev_b32 v15, 4, v251")
        A("s_nop 7")
        A("v_cmp_eq_u32 vcc, 1, v15"); A(f"v_mov_b32 v{res}, v{ACC}"); A("s_nop 0"); A(f"v_cndmask_b32 v{res}, v{res}, v{ACC+4}, vcc")
        A("v_cmp_eq_u32 vcc, 2, v15"); A("s_nop 1"); A(f"v_cndmask_b32 v{res}, v{res}, v{ACC+8}, vcc")
        A("v_cmp_eq_u32 vcc, 3, v15"); A("s_nop 1"); A(f"v_cndmask_b32 v{res}, v{res}, v{ACC+12}, vcc")

    def moe_steps(self):
        A = self.A; m = self.m
        S_M = S_TMP + 6
        XF = 56; ACC = 72
        gst = 4; gk0 = 128 * m
        dst = (4, 3)[m]; dk0 = 128 * m
        def tick(add):
            A(f"s_lshr_b32 s5, s{S_RB}, 1"); A("s_add_u32 s5, s5, 1"); A("s_and_b32 s5, s5, 3"); A(f"s_add_u32 s5, s5, {2 + add}"); A("s_mul_i32 s6, s5, 10")
            self.lds_spin_ge(L_LAND, 1, 1, "s5", 4, bound="s6")
        def gu_off():
            A("s_and_b32 s3, s2, 3"); A("s_lshl_b32 s3, s3, 8"); A(f"s_add_u32 s3, s3, {gk0}")
            A(f"s_mul_i32 s{S_M}, s3, 7168")
            A("s_lshr_b32 s3, s2, 2"); A("s_lshl_b32 s3, s3, 7"); A(f"s_add_u32 s{S_M}, s{S_M}, s3")
        def st_gate_issue():
            srd(A, SA, P_WG, 1024 * 3584 * 2); srd(A, SB, P_WU, 1024 * 3584 * 2)
            A("s_cmp_ge_u32 s2, 224")
            A(f"s_cselect_b32 s{SA+2}, 0, s{SA+2}"); A(f"s_cselect_b32 s{SB+2}, 0, s{SB+2}")
            A("v_lshrrev_b32 v18, 3, v251"); A("s_movk_i32 s3, 7168"); A("v_mul_lo_u32 v18, v18, s3")
            A("v_and_b32 v15, 7, v251"); A("v_lshl_add_u32 v18, v15, 4, v18")
            tick(0)
            gu_off(); self.moe_dma(SA, S_M, 7168, 18, gst)
        def st_key():
            self.get_key()
            if m == 0:
                A(f"v_mov_b32 v14, {L_CNT + 20}"); A("v_mov_b32 v15, 1"); A("ds_write_b32 v14, v15")
            A("v_lshrrev_b32 v15, 4, v251"); A("v_lshlrev_b32 v15, 3, v15")
            A("s_and_b32 s3, s2, 3"); A("s_lshl_b32 s3, s3, 9"); A(f"s_add_u32 s3, s3, {gk0*2}")
            A(f"s_lshl_b32 s4, s{S_SEL}, 11"); A("s_add_u32 s3, s3, s4")
            for i in range(2 * gst):
                A(f"buffer_load_dwordx2 {vr(XF+2*i,2)}, v15, s[{SX}:{SX+3}], s3 offen offset:{32*i}")
        def st_gate_mma():
            A("s_waitcnt vmcnt(0)")
            self.moe_mma(XF, ACC, 90, gst)
            tick(2)
            gu_off(); self.moe_dma(SB, S_M, 7168, 18, gst)
        def st_up_mma():
            A("s_waitcnt vmcnt(0)")
            self.moe_mma(XF, ACC, 91, gst)
            srd(A, SA, P_WD, 3584 * 1024 * 2)
            A("v_lshrrev_b32 v18, 3, v251"); A("v_lshlrev_b32 v18, 11, v18")
            A("v_and_b32 v15, 7, v251"); A("v_lshl_add_u32 v18, v15, 4, v18")
            A("v_lshlrev_b32 v14, 2, v251"); A(f"v_add_u32 v15, {L_PART + m*512}, v14")
            A("ds_write_b32 v15, v90"); A("ds_write_b32 v15, v91 offset:256")
            A("s_waitcnt lgkmcnt(0)")
            def fin():
                lab = A.newlabel("L_skip"); A("s_cmp_ge_u32 s2, 224"); A(f"s_cbranch_scc1 {lab}")
                A(f"v_lshlrev_b32 v14, 2, v251"); A(f"v_add_u32 v15, {L_PART}, v14")
                A("ds_read_b32 v92, v15"); A("ds_read_b32 v94, v15 offset:256"); A("ds_read_b32 v96, v15 offset:512"); A("ds_read_b32 v97, v15 offset:768")
                A(f"v_mov_b32 v93, s{S_TAG}"); A(f"v_mov_b32 v95, s{S_TAG}"); A("v_lshlrev_b32 v14, 3, v251")
                A("s_waitcnt lgkmcnt(0)")
                A("v_add_f32 v92, v92, v96"); A("v_add_f32 v94, v94, v97")
                A("s_and_b32 s3, s2, 3"); A(f"s_mul_i32 s3, s3, {2*3584*8}"); A("s_lshr_b32 s4, s2, 2"); A("s_lshl_b32 s4, s4, 9")
                A("s_add_u32 s3, s3, s4"); A(f"s_add_u32 s3, s3, {WS_GU}"); A(f"s_add_u32 s4, s3, {3584*8}")
                A(f"buffer_store_dwordx2 v[92:93], v14, s[{SWS}:{SWS+3}], s3 offen sc1")
                A(f"buffer_store_dwordx2 v[94:95], v14, s[{SWS}:{SWS+3}], s4 offen sc1")
                A.label(lab)
            self.last_arriver(1, fin, 2)
            A("s_lshr_b32 s3, s2, 4"); A("s_mul_i32 s3, s3, 224"); A(f"s_add_u32 s3, s3, {dk0}")
            A(f"s_lshl_b32 s{S_M}, s3, 11")
            A("s_and_b32 s3, s2, 15"); A("s_lshl_b32 s3, s3, 7"); A(f"s_add_u32 s{S_M}, s{S_M}, s3")
            tick(4)
            self.moe_dma(SA, S_M, 2048, 18, dst)
        def st_h():
            self.lds_spin_ge(L_LAND, 1, 1, self.o.get("h_at", 10), 8)
            A("s_lshr_b32 s3, s2, 4"); A("s_mul_i32 s3, s3, 224"); A(f"s_add_u32 s3, s3, {dk0}"); A("s_lshl_b32 s3, s3, 3")
            A(f"v_min_u32 v14, {16*dst-1}, v251"); A("v_lshlrev_b32 v14, 4, v14"); A("v_add_u32 v14, s3, v14")
            lab = A.newlabel("L_poll"); done = A.newlabel("L_polld")
            A(f"s_mov_b32 s96, {SPIN_MAX}")
            A.label(lab)
            for kq in range(4):
                for k in range(2):
                    A(f"s_mov_b32 s5, {WS_GU + (kq*2+k)*3584*8}")
                    A(f"buffer_load_dwordx4 {vr(96+8*kq+4*k,4)}, v14, s[{SWS}:{SWS+3}], s5 offen sc1")
            A("s_waitcnt vmcnt(0)")
            A(f"v_xor_b32 v16, s{S_TAG}, v97")
            for i in range(1, 16):
                A(f"v_xor_b32 v17, s{S_TAG}, v{97+2*i}"); A("v_or_b32 v16, v16, v17")
            A("v_cmp_ne_u32 vcc, 0, v16")
            A("s_sub_u32 s96, s96, 1"); A("s_cmp_eq_u32 s96, 0"); A(f"s_cbranch_scc1 {done}")
            A("s_nop 2")
            A(f"s_cbranch_vccz {done}")
            A("s_sleep 24")
            A(f"s_branch {lab}")
            A.label(done)
        def st_down_mma():
            for k, o in enumerate((0, 2, 4, 6)):
                A(f"v_add_f32 v{72+k}, v{96+o}, v{104+o}"); A(f"v_add_f32 v{80+k}, v{112+o}, v{120+o}"); A(f"v_add_f32 v{72+k}, v{72+k}, v{80+k}")
            A("v_cvt_pk_bf16_f32 v76, v72, v73"); A("v_cvt_pk_bf16_f32 v77, v74, v75")
            A("v_lshlrev_b32 v72, 16, v76"); A("v_and_b32 v73, 0xffff0000, v76")
            A("v_lshlrev_b32 v74, 16, v77"); A("v_and_b32 v75, 0xffff0000, v77")
            for k in range(2): A(f"v_mul_f32 v{76+k}, {hex(f32bits(-LOG2E))}, v{72+k}")
            for k in range(2): A(f"v_exp_f32 v{76+k}, v{76+k}")
            A("s_nop 0")
            for k in range(2): A(f"v_add_f32 v{76+k}, 1.0, v{76+k}")
            for k in range(2): A(f"v_rcp_f32 v{76+k}, v{76+k}")
            A("s_nop 0")
            for k in range(2): A(f"v_mul_f32 v{76+k}, v{72+k}, v{76+k}")
            A("v_cvt_pk_bf16_f32 v76, v76, v77")
            A("v_lshlrev_b32 v72, 16, v76"); A("v_and_b32 v73, 0xffff0000, v76")
            A("v_mul_f32 v72, v72, v74"); A("v_mul_f32 v73, v73, v75")
            A("v_cvt_pk_bf16_f32 v74, v72, v73")
            A("v_lshlrev_b32 v14, 2, v251"); A(f"v_add_u32 v14, {L_H + m*256}, v14")
            A("ds_write_b32 v14, v74")
            A("v_lshrrev_b32 v15, 4, v251"); A("v_lshlrev_b32 v15, 3, v15"); A(f"v_add_u32 v15, {L_H + m*256}, v15")
            A("s_waitcnt lgkmcnt(0)")
            for i in range(2 * dst): A(f"ds_read_b64 {vr(XF+2*i,2)}, v15 offset:{32*i}")
            A("s_waitcnt lgkmcnt(0)")
            self.moe_mma(XF, ACC, 90, dst)
            A("v_lshlrev_b32 v14, 2, v251"); A(f"v_add_u32 v15, {L_PART + 1536 + m*256}, v14")
            A("ds_write_b32 v15, v90")
            A("s_waitcnt lgkmcnt(0)")
            def fin():
                A(f"v_lshlrev_b32 v14, 2, v251"); A(f"v_add_u32 v15, {L_PART + 1536}, v14")
                A("ds_read_b32 v92, v15"); A("ds_read_b32 v94, v15 offset:256")
                A(f"v_mov_b32 v93, s{S_TAG}"); A("v_lshlrev_b32 v14, 3, v251")
                A("s_waitcnt lgkmcnt(0)")
                A("v_add_f32 v92, v92, v94")
                A("s_lshr_b32 s3, s2, 4"); A("s_lshl_b32 s3, s3, 13"); A("s_and_b32 s4, s2, 15"); A("s_lshl_b32 s4, s4, 9")
                A("s_add_u32 s3, s3, s4"); A(f"s_add_u32 s3, s3, {WS_YP}")
                A(f"buffer_store_dwordx2 v[92:93], v14, s[{SWS}:{SWS+3}], s3 offen sc1")
            self.last_arriver(2, fin, 2)
        return dict(gate_issue=st_gate_issue, key=st_key, gate_mma=st_gate_mma, up_mma=st_up_mma, h=st_h, down_mma=st_down_mma)

    def p3_operands(self):
        A = self.A
        VL16, VLANE = 250, 251
        S_RT, S_CT, S_OB, S_R = S_TMP+10, S_TMP+11, S_TMP+12, S_TMP+13
        XR, GR, VOUT = 170, 178, 179
        A("s_and_b32 s3, s2, 7"); A("s_lshl_b32 s3, s3, 1"); A("s_lshr_b32 s4, s2, 7"); A(f"s_add_u32 s{S_RT}, s3, s4")
        A("s_lshr_b32 s3, s2, 3"); A(f"s_and_b32 s{S_CT}, s3, 15")
        A(f"s_and_b32 s3, s{S_WAVE}, 3"); A(f"s_lshl_b32 s4, s{S_RT}, 2"); A(f"s_add_u32 s{S_R}, s3, s4")
        A(f"v_and_b32 v180, 31, v{VLANE}")
        A(f"s_lshl_b32 s3, s{S_R}, 5"); A("v_add_u32 v180, s3, v180")
        A(f"v_lshrrev_b32 v181, 5, v{VLANE}")
        A(f"s_lshr_b32 s4, s{S_WAVE}, 2"); A("s_lshl_b32 s4, s4, 6"); A(f"s_lshl_b32 s5, s{S_CT}, 7"); A("s_add_u32 s4, s4, s5")
        A("v_lshlrev_b32 v182, 11, v180"); A("v_add_u32 v182, s4, v182")
        A(f"v_lshl_add_u32 v{VOUT}, v181, 4, v182")
        A("v_lshl_add_u32 v182, v181, 3, v182")
        for G in range(4): A(f"buffer_load_dwordx2 {vr(XR+2*G,2)}, v182, s[{SX}:{SX+3}], 0 offen offset:{16*G}")
        A("v_lshlrev_b32 v183, 2, v180"); A(f"s_mov_b32 s5, {WS_G}")
        A(f"buffer_load_dword v{GR}, v183, s[{SWS}:{SWS+3}], s5 offen sc1")
        A(f"s_mov_b32 s5, {WS_KEYS}")
        A(f"buffer_load_dwordx4 v[192:195], v{VL16}, s[{SWS}:{SWS+3}], s5 offen sc1")
        A(f"buffer_load_dwordx4 v[196:199], v{VL16}, s[{SWS}:{SWS+3}], s5 offen offset:1024 sc1")
        if hasattr(self, "vm"): self.vm_add("p3op", 6)

    def p3(self):
        A = self.A
        A.label("L_p3")
        VL16, VLANE = 250, 251
        S_RT, S_CT, S_OB, S_R = S_TMP+10, S_TMP+11, S_TMP+12, S_TMP+13
        XR, GR, VOUT = 170, 178, 179
        srd(A, SB, P_OUT, 2048 * 1024 * 2)
        VK, VS = 186, 187
        A(f"v_bfe_u32 v188, v{VLANE}, 2, 2"); A("v_lshl_add_u32 v188, v181, 2, v188"); A("v_lshlrev_b32 v188, 7, v188")
        A(f"v_and_b32 v189, 3, v{VLANE}"); A("v_lshl_add_u32 v188, v189, 3, v188")
        A(f"v_bfe_u32 v189, v{VLANE}, 4, 1"); A("v_lshl_add_u32 v188, v189, 5, v188")
        A(f"s_lshr_b32 s4, s{S_WAVE}, 2")
        A(f"v_bfe_u32 v189, v{VLANE}, 3, 1"); A("v_xor_b32 v189, s4, v189")
        A(f"v_lshl_add_u32 v{VK}, v189, 6, v188")
        A("s_lshl_b32 s5, s4, 16"); A(f"v_add_u32 v{VK}, s5, v{VK}")
        A(f"v_xor_b32 v{VS}, 64, v{VK}")
        A(f"s_lshl_b32 s{S_OB}, s{S_R}, 16"); A("s_lshl_b32 s5, s4, 15"); A(f"s_add_u32 s{S_OB}, s{S_OB}, s5"); A(f"s_add_u32 s{S_OB}, s{S_OB}, {WS_O}")
        labw = A.newlabel("L_nw")
        A(f"s_cmp_ge_u32 s{S_WAVE}, 4"); A(f"s_cbranch_scc1 {labw}")
        A("s_waitcnt vmcnt(0)")
        A.label(labw)
        self.stampit(252)
        A("s_barrier")
        labp = A.newlabel("L_np")
        A(f"s_cmp_lg_u32 s{S_WAVE}, 5"); A(f"s_cbranch_scc1 {labp}")
        def c():
            A(f"s_lshl_b32 s3, s{S_RB}, 4"); A(f"s_add_u32 s3, s3, s{S_HP}"); A("s_lshl_b32 s3, s3, 2"); A(f"s_add_u32 s3, s3, {WS_F3}")
        self.set_flag(c)
        A.label(labp)
        A("s_waitcnt vmcnt(0)")
        self.key_reduce(192, 185)
        YR = 192
        labn = A.newlabel("L_nomoe")
        A(f"s_lshr_b32 s3, s{S_SEL}, 5")
        A(f"s_cmp_lg_u32 s3, s{S_R}")
        A(f"s_cbranch_scc1 {labn}")
        if self.moe:
            A(f"v_and_b32 v14, 31, v{VLANE}"); A("v_lshlrev_b32 v14, 3, v14"); A("v_lshl_add_u32 v14, v181, 16, v14")
            A(f"s_lshr_b32 s4, s{S_WAVE}, 2"); A("s_lshl_b32 s4, s4, 8"); A(f"s_lshl_b32 s5, s{S_CT}, 9"); A("s_add_u32 s4, s4, s5"); A(f"s_add_u32 s6, s4, {WS_YP}")
            lab = A.newlabel("L_poll"); done = A.newlabel("L_polld")
            A(f"s_mov_b32 s96, {SPIN_MAX}")
            A.label(lab)
            A("s_mov_b32 s4, s6")
            for i in range(8):
                A(f"buffer_load_dwordx2 {vr(32+2*i,2)}, v14, s[{SWS}:{SWS+3}], s4 offen sc1")
                A("s_add_u32 s4, s4, 8192")
            A("s_waitcnt vmcnt(0)")
            A(f"v_xor_b32 v16, s{S_TAG}, v33")
            for i in range(1, 8):
                A(f"v_xor_b32 v17, s{S_TAG}, v{33+2*i}"); A("v_or_b32 v16, v16, v17")
            A("v_cmp_ne_u32 vcc, 0, v16")
            A("s_sub_u32 s96, s96, 1"); A("s_cmp_eq_u32 s96, 0"); A(f"s_cbranch_scc1 {done}")
            A("s_nop 2")
            A(f"s_cbranch_vccz {done}")
            A("s_sleep 4")
            A(f"s_branch {lab}")
            A.label(done)
            A(f"s_and_b32 s3, s{S_KEY}, 0xffff0000"); A("s_bitcmp1_b32 s3, 31"); A("s_mov_b32 s4, 0xffff0000")
            A("s_cselect_b32 s4, 0x80000000, s4"); A("s_xor_b32 s3, s3, s4")
            A(f"v_mov_b32 v30, {hex(f32bits(-LOG2E))}"); A("v_mul_f32 v30, s3, v30"); A("v_exp_f32 v30, v30"); A("s_nop 0")
            A("v_add_f32 v30, 1.0, v30"); A("v_rcp_f32 v30, v30"); A("s_nop 0")
            A("v_cvt_pk_bf16_f32 v30, v30, v30"); A("v_lshlrev_b32 v30, 16, v30")
            A("v_add_f32 v20, v32, v34")
            for i in range(2, 8): A(f"v_add_f32 v20, v20, v{32+2*i}")
            A("v_mov_b32 v21, v20"); A("s_nop 1"); A("v_permlane32_swap_b32 v20, v21"); A("s_nop 1"); A("v_add_f32 v20, v20, v21")
            A("v_cvt_pk_bf16_f32 v20, v20, v20"); A("v_lshlrev_b32 v20, 16, v20"); A("v_mul_f32 v20, v20, v30")
            A("v_cvt_pk_bf16_f32 v20, v20, v20"); A("v_lshlrev_b32 v20, 16, v20")
            A("v_lshlrev_b32 v21, 4, v181")
            for r in range(16): A(f"ds_bpermute_b32 v{YR+r}, v21, v20 offset:{(8*(r>>2)+(r&3))*4}")
            A(f"v_cmp_eq_u32 vcc, s{S_SEL}, v180")
            A("s_waitcnt lgkmcnt(0)")
            for r in range(16): A(f"v_cndmask_b32 v{YR+r}, 0, v{YR+r}, vcc")
            A(f"s_mov_b32 s{S_TMP+8}, 1")
            A(f"s_branch {labn}_j")
        A.label(labn)
        A(f"s_mov_b32 s{S_TMP+8}, 0")
        A.label(labn + "_j")
        labq = A.newlabel("L_np")
        A(f"s_cmp_lg_u32 s{S_WAVE}, 5"); A(f"s_cbranch_scc1 {labq}")
        A(f"v_lshlrev_b32 v14, 2, v{VLANE}")
        A(f"s_lshl_b32 s5, s{S_RT}, 6"); A(f"s_add_u32 s5, s5, {WS_F3}")
        self.poll_val(SWS, 14, "s5", 0xffff, f"s{S_TAG}", 16)
        A.label(labq)
        self.stampit(252)
        A("s_barrier")
        self.stampit(252)
        OF = 32; WF = [160, 208]
        S_ROT, S_I = S_TMP+4, S_TMP+5
        A(f"s_lshr_b32 s3, s{S_WAVE}, 2"); A(f"s_lshl_b32 s{S_TMP+6}, s3, 15")
        A(f"s_lshl_b32 s{S_ROT}, s{S_CT}, 1")
        A(f"s_mov_b32 s{S_I}, s{S_ROT}")
        S_J = S_TMP + 7
        A(f"s_mov_b32 s{S_J}, s{S_ROT}")
        DEPTH = self.o.get("odepth", 8)
        def oload(i):
            A(f"s_lshl_b32 s3, s{S_J}, 10"); A(f"s_add_u32 s3, s3, s{S_OB}")
            A(f"buffer_load_dwordx4 {vr(OF+4*i,4)}, v{VL16}, s[{SWS}:{SWS+3}], s3 offen sc1")
            A(f"s_add_u32 s{S_J}, s{S_J}, 1"); A(f"s_and_b32 s{S_J}, s{S_J}, 31")
        for i in range(DEPTH):
            oload(i)
            if i == 1 and self.o.get("lead", 1): A("s_barrier")
        def wread(buf):
            w = WF[buf]
            A(f"s_lshl_b32 s3, s{S_I}, 11")
            A(f"s_and_b32 s4, s3, s{S_TMP+6}"); A("s_add_u32 s3, s3, s4")
            A(f"v_add_u32 v190, s3, v{VK}"); A(f"v_add_u32 v191, s3, v{VS}")
            A(f"ds_read_b64_tr_b16 {vr(w,2)}, v190"); A(f"ds_read_b64_tr_b16 {vr(w+2,2)}, v190 offset:1024")
            A(f"ds_read_b64_tr_b16 {vr(w+4,2)}, v191"); A(f"ds_read_b64_tr_b16 {vr(w+6,2)}, v191 offset:1024")
            A(f"s_add_u32 s{S_I}, s{S_I}, 1"); A(f"s_and_b32 s{S_I}, s{S_I}, 31")
        wread(0)
        for i in range(32):
            issued = min(32, i + DEPTH)
            if i + 1 < 32:
                wread((i + 1) & 1)
                A(f"s_waitcnt vmcnt({issued-1-i}) lgkmcnt(4)")
            else:
                A("s_waitcnt vmcnt(0) lgkmcnt(0)")
            if self.o.get("st3", 0) and i in (0, 2, 8, 16, 24): self.stampit(252)
            w = WF[i & 1]
            A(mfma32(0, w, OF + 4*i, None if i == 0 else 0))
            A(mfma32(16, w + 4, OF + 4*i, None if i == 0 else 16))
            if i + DEPTH < 32: oload(i + DEPTH)
        self.stampit(252)
        A(f"s_lshl_b32 s3, s{S_WAVE}, 12"); A(f"s_add_u32 s3, s3, {L_R1}"); A(f"v_add_u32 v190, s3, v{VL16}")
        A("s_xor_b32 s3, s3, 16384"); A(f"v_add_u32 v191, s3, v{VL16}")
        A("v_sub_f32 v189, 1.0, v178"); A("v_cvt_pk_bf16_f32 v189, v189, v189"); A("v_lshlrev_b32 v189, 16, v189")
        A("s_nop 7")
        for r in range(4): A(f"ds_write_b128 v190, {vr(16+4*r,4)} offset:{1024*r}")
        for G in range(4):
            for d in range(2):
                x = XR + 2*G + d; o = 32 + 4*G + 2*d
                A(f"v_lshlrev_b32 v{o}, 16, v{x}"); A(f"v_and_b32 v{o+1}, 0xffff0000, v{x}")
        labm = A.newlabel("L_nm")
        A(f"s_cmp_eq_u32 s{S_TMP+8}, 0"); A(f"s_cbranch_scc1 {labm}")
        for r in range(16): A(f"v_add_f32 v{32+r}, v{32+r}, v{YR+r}")
        A.label(labm)
        for r in range(16): A(f"v_mul_f32 v{32+r}, v189, v{32+r}")
        A("s_waitcnt lgkmcnt(0)")
        A("s_barrier")
        for r in range(4): A(f"ds_read_b128 {vr(16+4*r,4)}, v191 offset:{1024*r}")
        A("s_waitcnt lgkmcnt(0)")
        for r in range(16): A(f"v_add_f32 v{r}, v{r}, v{16+r}")
        for r in range(16): A(f"v_fma_f32 v{r}, v{GR}, v{r}, v{32+r}")
        for i in range(8): A(f"v_cvt_pk_bf16_f32 v{48+i}, v{2*i}, v{2*i+1}")
        A("s_nop 1")
        for pr in range(2):
            A(f"v_permlane32_swap_b32 v{48+4*pr}, v{48+4*pr+2}")
            A(f"v_permlane32_swap_b32 v{48+4*pr+1}, v{48+4*pr+3}")
        A("s_nop 1")
        for pr in range(2):
            A(f"buffer_store_dwordx4 {vr(48+4*pr,4)}, v{VOUT}, s[{SB}:{SB+3}], 0 offen offset:{32*pr}")
        self.stampit(252)
        self.stamp_flush(252, 190, VLANE)
        A("s_endpgm")

    def build(self):
        A = self.A
        self.prologue()
        self.p1_compute()
        self.p2_compute()
        A("s_branch L_p3")
        self.fallback()
        self.helper_p1()
        self.helper_p2()
        self.p3()
        A.label("L_end")
        A("s_endpgm")
        return HEADER.format(grid=256, block=512, lds=LDS_BYTES, name=KN) + A.text() + FOOTER.format(name=KN, nvgpr=256, accum=256)


if __name__ == "__main__":
    import argparse, json
    ap = argparse.ArgumentParser()
    ap.add_argument("out"); ap.add_argument("--rot", type=int, default=0); ap.add_argument("--stamp", action="store_true")
    ap.add_argument("--nomoe", action="store_true"); ap.add_argument("--opts", default="{}")
    a = ap.parse_args()
    g = Gen(rot=a.rot, stamp=a.stamp, moe=not a.nomoe, opts=json.loads(a.opts))
    open(a.out, "w").write(g.build())
```

```python
import sys, math, struct
from asmlib import *

KN = "gated_mix__softmax_full_mha__moe_arch_mod__prompt_kernel"
def f32bits(x): return struct.unpack("<I", struct.pack("<f", x))[0]
QSCALE = math.log2(math.e) / math.sqrt(32.0)
LOG2E = math.log2(math.e)

WS_KV = 0
WS_O  = 8 << 20
WS_G  = 12 << 20
WS_GU = WS_G + 0x4000
WS_YP = WS_G + 0x40000
WS_F1 = WS_G + 0x60000
WS_F3 = WS_F1 + 0x800
WS_KEYS = WS_F1 + 0x1000
WS_FA = WS_F1 + 0x2000
WS_KVA = 20 << 20
WS_ST = 16 << 20
DBG_C0, DBG_KEY, DBG_C1 = 0, 128, 132

G_STAGE = 40960; G_NSLOT = 3
L_WR = 3 * 40960
KV_SLOT = 32768; KV_NSLOT = 4
L_R2 = 131072
L_R1 = L_R2 + 24576
L_CNT = L_R1
L_LAND = L_R1 + 32
L_PROG = L_R1 + 256
L_PART = L_R1 + 2048
L_H = L_R1 + 4608
L_TAG = L_R1 + 6144
LDS_BYTES = 163840

SPIN_MAX = 1 << 16
OPS_AT = 10

P_X, P_W, P_WO, P_BX, P_WR, P_WG, P_WU, P_WD, P_GW, P_OUT, P_DBG, P_WS = [16 + 2 * i for i in range(12)]
SX, SW, SWS, SDBG, SA, SB = 40, 44, 48, 52, 56, 60
S_WAVE, S_RB, S_HP, S_U, S_T0 = 64, 65, 66, 67, 68
S_SEL, S_KEY = 70, 71
S_XCC = 73
S_TAG = 15
S_STI = 72
S_TMP = 74


class Gen:
    def __init__(self, rot=0, stamp=False, moe=True, stop_after=3, opts=None):
        self.A = Asm()
        self.rot = rot; self.stamp = stamp; self.moe = moe; self.stop_after = stop_after
        self.o = opts or {}

    def stampit(self, vreg):
        if not self.stamp: return
        A = self.A
        if self.o.get("rt", 0):
            A("s_memrealtime s[98:99]"); A("s_waitcnt lgkmcnt(0)"); A("s_sub_u32 s98, s98, s100"); A("s_add_u32 s98, s98, 1")
        else:
            A("s_memtime s[98:99]")
            A("s_waitcnt lgkmcnt(0)")
            A(f"s_sub_u32 s98, s98, s{S_T0}")
        A(f"s_mov_b32 m0, s{S_STI}")
        A("s_nop 1")
        A(f"v_writelane_b32 v{vreg}, s98, m0")
        A(f"s_add_u32 s{S_STI}, s{S_STI}, 1")

    def stamp_flush(self, vreg, vtmp, vlane):
        if not self.stamp: return
        A = self.A
        A("s_memrealtime s[98:99]"); A("s_waitcnt lgkmcnt(0)")
        A(f"v_writelane_b32 v{vreg}, s100, 62"); A(f"v_writelane_b32 v{vreg}, s98, 63")
        A(f"s_lshl_b32 s98, s2, 11")
        A(f"s_lshl_b32 s99, s{S_WAVE}, 8")
        A(f"s_add_u32 s98, s98, s99")
        A(f"s_add_u32 s98, s98, {WS_ST}")
        A(f"v_lshlrev_b32 v{vtmp}, 2, v{vlane}")
        A(f"buffer_store_dword v{vreg}, v{vtmp}, s[{SWS}:{SWS+3}], s98 offen")
        if self.o.get("dbgwg") is not None:
            lab = A.newlabel("L_dbg")
            A(f"s_lshl_b32 s98, s2, 3"); A(f"s_add_u32 s98, s98, s{S_WAVE}"); A(f"s_cmp_lg_u32 s98, {self.o['dbgwg']*8}"); A(f"s_cbranch_scc1 {lab}")
            A("s_mov_b64 exec, 0x7fff")
            A(f"buffer_store_dword v{vreg}, v{vtmp}, s[{SDBG}:{SDBG+3}], 0 offen offset:4")
            A.label(lab)

    def poll(self, srd_, voff, soff, nlanes_mask, want, vtmp, cmp="eq"):
        A = self.A
        lab = A.newlabel("L_poll"); done = A.newlabel("L_polld")
        A(f"s_mov_b32 s96, {SPIN_MAX}")
        A(f"s_mov_b64 exec, {hex(nlanes_mask)}")
        A.label(lab)
        A(f"buffer_load_dword v{vtmp}, v{voff}, s[{srd_}:{srd_+3}], {soff} offen sc1")
        A("s_waitcnt vmcnt(0)")
        A(f"v_cmp_ne_u32 vcc, {want}, v{vtmp}")
        A("s_sub_u32 s96, s96, 1")
        A("s_cmp_eq_u32 s96, 0")
        A(f"s_cbranch_scc1 {done}")
        A("s_nop 2")
        A(f"s_cbranch_vccz {done}")
        A("s_sleep 1")
        A(f"s_branch {lab}")
        A.label(done)
        A("s_mov_b64 exec, -1")

    def prologue(self):
        A = self.A
        A("s_cmp_ge_u32 s2, 256")
        A("s_cbranch_scc1 L_end")
        A("s_load_dwordx16 s[16:31], s[0:1], 0")
        A("s_load_dwordx8 s[32:39], s[0:1], 64")
        if self.stamp:
            A(f"s_memtime s[{S_T0}:{S_T0+1}]")
            A(f"s_mov_b32 s{S_STI}, 0")
            A("s_memrealtime s[100:101]")
        A("v_lshrrev_b32 v1, 6, v0")
        A("v_and_b32 v0, 63, v0")
        A(f"v_readfirstlane_b32 s{S_WAVE}, v1")
        A("s_and_b32 s3, s2, 7")
        A("s_lshr_b32 s4, s2, 3")
        A("s_and_b32 s5, s3, 1")
        A("s_lshl_b32 s5, s5, 3")
        A("s_and_b32 s6, s4, 7")
        A(f"s_add_u32 s{S_RB}, s5, s6")
        A("s_lshr_b32 s5, s3, 1")
        A("s_lshl_b32 s5, s5, 2")
        A("s_lshr_b32 s6, s4, 3")
        A(f"s_add_u32 s{S_HP}, s5, s6")
        A("s_waitcnt lgkmcnt(0)")
        srd(A, SX, P_X, 2048 * 1024 * 2)
        srd(A, SW, P_W, 1024 * 3072 * 2)
        srd(A, SWS, P_WS, 32 << 20)
        srd(A, SDBG, P_DBG, 256)
        A(f"s_cmp_ge_u32 s{S_WAVE}, 4")
        A("s_cbranch_scc1 L_helper")

    def p1_compute(self):
        A = self.A
        FA, FB, VX, VW = 96, 116, 136, 140
        VL16 = 250
        VLANE = 251
        self.VL16, self.VLANE = VL16, VLANE
        A(f"v_mov_b32 v{VLANE}, v0")
        A(f"v_lshlrev_b32 v{VL16}, 4, v0")
        if self.stamp: A("v_mov_b32 v252, 0")
        A(f"s_and_b32 s{S_U}, s{S_WAVE}, 1")
        lab = A.newlabel("L_tag")
        A(f"s_lshl_b32 s3, s2, 3"); A(f"s_add_u32 s3, s3, s{S_WAVE}"); A("s_cmp_lg_u32 s3, 1"); A(f"s_cbranch_scc1 {lab}")
        A("s_memrealtime s[4:5]"); A("s_waitcnt lgkmcnt(0)")
        A("s_and_b32 s4, s4, 0x7ffffff0"); A("s_or_b32 s4, s4, 0x80000000")
        A("v_mov_b32 v141, 0"); A("v_mov_b32 v142, s4")
        A("s_mov_b64 exec, 1")
        A(f"buffer_store_dword v142, v141, s[{SDBG}:{SDBG+3}], 0 offen sc1")
        A("s_mov_b64 exec, -1")
        A.label(lab)
        xt = self.o.get("xtouch", 0)
        if xt:
            lab = A.newlabel("L_xt")
            A(f"s_cmp_ge_u32 s{S_WAVE}, 2"); A(f"s_cbranch_scc1 {lab}")
            A(f"s_lshl_b32 s3, s{S_RB}, 18"); A(f"s_lshl_b32 s4, s{S_HP}, 14"); A("s_add_u32 s3, s3, s4")
            A(f"s_lshl_b32 s4, s{S_WAVE}, 13"); A("s_add_u32 s3, s3, s4")
            A("v_lshlrev_b32 v141, 7, v0")
            A(f"buffer_load_dword v249, v141, s[{SX}:{SX+3}], s3 offen")
            A.label(lab)
            if xt >= 2:
                lab = A.newlabel("L_xt")
                A(f"s_cmp_eq_u32 s{S_WAVE}, 0"); A(f"s_cbranch_scc1 {lab}")
                A(f"s_mul_i32 s3, s2, 24576"); A(f"s_sub_u32 s4, s{S_WAVE}, 1"); A("s_lshl_b32 s4, s4, 13"); A("s_add_u32 s3, s3, s4")
                A("v_lshlrev_b32 v141, 7, v0")
                A(f"buffer_load_dword v249, v141, s[{SW}:{SW+3}], s3 offen")
                A.label(lab)
        A("v_and_b32 v141, 31, v0")
        A("v_lshrrev_b32 v142, 5, v0")
        A("v_bfe_u32 v143, v0, 1, 3")
        A("v_xor_b32 v143, v143, v142")
        A("v_lshlrev_b32 v143, 4, v143")
        A("v_lshlrev_b32 v141, 7, v141")
        A(f"s_lshr_b32 s3, s{S_WAVE}, 1")
        A("s_lshl_b32 s3, s3, 13")
        A("v_add_u32 v141, s3, v141")
        for j in range(4):
            A(f"v_xor_b32 v{VX+j}, {32*j}, v143")
            A(f"v_add_u32 v{VX+j}, v{VX+j}, v141")
        A("v_bfe_u32 v143, v0, 2, 2")
        A("v_lshl_add_u32 v143, v142, 3, v143")
        A("v_lshlrev_b32 v143, 7, v143")
        A("v_and_b32 v141, 3, v0")
        A("v_lshl_add_u32 v143, v141, 3, v143")
        A("v_bfe_u32 v141, v0, 4, 1")
        A("v_lshl_add_u32 v143, v141, 5, v143")
        A("v_bfe_u32 v141, v0, 3, 1")
        A(f"v_xor_b32 v141, s{S_U}, v141")
        A(f"v_lshl_add_u32 v{VW}, v141, 6, v143")
        for i in range(96): A(f"v_mov_b32 v{i}, 0")

        def reads(F, j):
            r = [f"ds_read_b128 {vr(F,4)}, v{VX+j}"]
            for seg in range(3):
                for r2 in range(2):
                    r.append(f"ds_read_b64_tr_b16 {vr(F+8+4*seg+2*r2,2)}, v{VW} offset:{16384+seg*8192+j*2048+r2*512}")
            r.append(f"ds_read_b128 {vr(F+4,4)}, v{VX+j} offset:4096")
            return r
        def mf(F):
            x0, x1, wq, wk, wv = F, F+4, F+8, F+12, F+16
            return [mfma32(0,wq,x0,0), mfma32(16,wk,x0,16), mfma32(32,x0,wv,32),
                    mfma32(48,wq,x1,48), mfma32(64,wk,x1,64), mfma32(80,x1,wv,80)]
        S_CNT, S_SLOT, S_D = S_TMP, S_TMP+1, S_TMP+2
        A(f"s_mov_b32 s{S_CNT}, 16")
        A(f"s_mov_b32 s{S_SLOT}, 0")
        A(f"s_mov_b32 s{S_D+1}, {-(G_NSLOT-1)*G_STAGE & 0xffffffff}")
        A(f"s_mov_b32 s{S_D+2}, {G_STAGE}")
        self.stampit(252)
        A("s_barrier")
        self.stampit(252)
        for r in reads(FA, 0): A(r)
        A.raw(".p2align 6")
        A.label("L_g1loop")
        def step(Fc, Fn, jn, kind, extra=None):
            m = mf(Fc); r = reads(Fn, jn)
            extra = extra or {}
            if kind in ("norm", "after"):
                pat = [2,2,1,1,1,1]; k = 0
                for i in range(6):
                    if kind == "norm" and i < 4: A("s_waitcnt lgkmcnt(5)")
                    A(m[i])
                    for _ in range(pat[i]): A(r[k]); k += 1
                    for x in extra.get(i, []): A(x)
            else:
                A("s_waitcnt lgkmcnt(5)"); A(m[0]); A(r[0]); A(r[1]); A(r[2])
                A("s_waitcnt lgkmcnt(6)"); A(m[1]); A(r[3]); A(r[4]); A(r[5])
                A("s_waitcnt lgkmcnt(7)"); A(m[2]); A(r[6]); A(r[7])
                A("s_waitcnt lgkmcnt(8)"); A(m[3])
                A(f"v_add_u32 v{VX+2}, s{S_D}, v{VX+2}"); A(f"v_add_u32 v{VX+3}, s{S_D}, v{VX+3}"); A(f"v_add_u32 v{VW}, s{S_D}, v{VW}")
                A(m[4])
                A(f"s_sub_u32 s{S_CNT}, s{S_CNT}, 1")
                A(m[5])
                A("s_waitcnt lgkmcnt(0)")
                if self.o.get("st1", 0): self.stampit(252)
                A("s_barrier")
                if self.o.get("st1", 0): self.stampit(252)
        slotadv = [f"s_add_u32 s{S_SLOT}, s{S_SLOT}, 1", f"s_cmp_eq_u32 s{S_SLOT}, {G_NSLOT}",
                   f"s_cselect_b32 s{S_D}, s{S_D+1}, s{S_D+2}", f"s_cselect_b32 s{S_SLOT}, 0, s{S_SLOT}"]
        step(FA, FB, 1, "norm", {3: slotadv[:2], 4: slotadv[2:], 5: [f"v_add_u32 v{VX}, s{S_D}, v{VX}"]})
        step(FB, FA, 2, "norm", {4: [f"v_add_u32 v{VX+1}, s{S_D}, v{VX+1}"]})
        step(FA, FB, 3, "bar")
        step(FB, FA, 0, "after", {4: [f"s_cmp_lg_u32 s{S_CNT}, 0"]})
        A("s_cbranch_scc1 L_g1loop")
        A("s_waitcnt lgkmcnt(0)")
        self.stampit(252)
        A(f"s_lshl_b32 s3, s{S_U}, 14")
        A(f"s_lshr_b32 s4, s{S_WAVE}, 1")
        A("s_lshl_b32 s4, s4, 13")
        A("s_add_u32 s3, s3, s4")
        A(f"v_add_u32 v141, s3, v{VL16}")
        A(f"s_lshl_b32 s5, s{S_HP}, 19"); A(f"s_lshl_b32 s6, s{S_RB}, 15"); A("s_add_u32 s5, s5, s6"); A("s_add_u32 s5, s5, s3")
        A(f"s_add_u32 s5, s5, {WS_KVA}"); A("s_add_u32 s6, s5, 4096")
        A(f"s_mov_b32 s3, {f32bits(QSCALE)}")
        A("s_nop 7")
        for t in range(2):
            b = 48 * t
            for blk in (1, 2):
                for i in range(8):
                    A(f"v_cvt_pk_bf16_f32 v{96+16*t+8*(blk-1)+i}, v{b+16*blk+2*i}, v{b+16*blk+2*i+1}")
            for f in range(4):
                A(f"buffer_store_dwordx4 {vr(96+16*t+4*f,4)}, v{VL16}, s[{SWS}:{SWS+3}], s{5+t} offen offset:{1024*f}")
            for f in range(4):
                A(f"ds_write_b128 v141, {vr(96+16*t+4*f,4)} offset:{4096*t+1024*f}")
        self.QA, self.QB = 200, 208
        for t in range(2):
            b = 48 * t
            for i in range(16): A(f"v_mul_f32 v{b+i}, s3, v{b+i}")
            for i in range(8): A(f"v_cvt_pk_bf16_f32 v{200+8*t+i}, v{b+2*i}, v{b+2*i+1}")
        A("s_waitcnt lgkmcnt(0)")
        A("s_barrier")
        self.read_tag(160)
        self.stampit(252)

    def p2_compute(self):
        A = self.A
        S = [0, 16]; O = [32, 48]; NM = [64, 80]; P = [96, 104]; KB = [112, 120]; VB = [128, 136]
        L = [144, 148]; ONES = 152; IDX = 156; VA = 157; VBASE = 158; Q = [self.QA, self.QB]
        self.r2 = dict(S=S, O=O, NM=NM, P=P, KB=KB, VB=VB, L=L, ONES=ONES, IDX=IDX, Q=Q)
        VL16 = self.VL16; VLANE = self.VLANE
        A(f"s_lshl_b32 s3, s{S_U}, 14")
        A(f"v_add_u32 v{VBASE}, s3, v{VL16}")
        A(f"v_mov_b32 v{VA}, v{VBASE}")
        def rdK(buf, kt, f): return f"ds_read_b128 {vr(KB[buf]+4*f,4)}, v{VA} offset:{kt*4096+f*1024}"
        def rdV(buf, kt, f): return f"ds_read_b128 {vr(VB[buf]+4*f,4)}, v{VA} offset:{kt*4096+2048+f*1024}"
        A(rdK(0,0,0)); A(rdK(0,0,1)); A(rdV(0,0,0)); A(rdV(0,0,1))
        A(f"v_and_b32 v160, 2, v{VLANE}")
        A(f"v_bfe_u32 v161, v{VLANE}, 2, 1")
        A("v_mov_b32 v162, 0x3f803f80")
        A("v_cmp_eq_u32 vcc, 0, v160")
        A("s_nop 1")
        A("v_cndmask_b32 v162, 0, v162, vcc")
        A("v_cmp_eq_u32 vcc, 0, v161")
        A("s_nop 1")
        A(f"v_cndmask_b32 v{ONES}, 0, v162, vcc")
        A(f"v_cndmask_b32 v{ONES+1}, 0, v162, vcc")
        A(f"v_sub_u32 v{ONES+2}, v162, v{ONES}")
        A(f"v_sub_u32 v{ONES+3}, v162, v{ONES}")
        A(f"v_and_b32 v160, 1, v{VLANE}")
        A("v_mov_b32 v161, 0x44444444")
        A("v_mov_b32 v163, 0xeeeeeeee")
        A("v_cmp_eq_u32 vcc, 0, v160")
        A("s_nop 1")
        A(f"v_cndmask_b32 v{IDX}, v163, v161, vcc")
        for q in range(2):
            for i in range(16): A(f"v_mov_b32 v{O[q]+i}, 0")
            for i in range(4): A(f"v_mov_b32 v{L[q]+i}, 0")
        A("s_waitcnt lgkmcnt(2)")
        for q in range(2):
            A(mfma32(S[q], KB[0], Q[q], None))
            A(mfma32(S[q], KB[0]+4, Q[q]+4, S[q]))
        A("s_nop 7")
        A("s_nop 3")
        self.rowmax_to_nm(S, NM)
        A.label("L_att_start")
        A("s_nop 1")
        A(mfma32(S[0], KB[0], Q[0], NM[0]))
        A(mfma32(S[0], KB[0]+4, Q[0]+4, S[0]))
        A("s_waitcnt lgkmcnt(0)")
        A("s_nop 7")
        A("s_nop 3")

        VT, VLA, VPA, VST = 159, 166, 167, 168
        A(f"v_mov_b32 v{VLA}, {L_LAND}"); A("v_mov_b32 v171, 0")
        A(f"s_lshl_b32 s3, s{S_WAVE}, 8"); A(f"s_add_u32 s3, s3, {L_PROG}")
        A(f"v_lshl_add_u32 v{VPA}, v{VLANE}, 2, s3")
        def unit(q, t, kt_rd, do_qk=True, do_pv=True, do_rd=True, tail=None, chk=False):
            o = 1 - q
            s = S[q]; p = P[q]
            e = lambda i: f"v_exp_f32 v{s+i}, v{s+i}"
            c = lambda i: f"v_cvt_pk_bf16_f32 v{p+i}, v{s+2*i}, v{s+2*i+1}"
            if q == 0:
                kb = KB[t & 1]; vb = VB[(t - 1) & 1]
                rd = [rdK((t + 1) & 1, kt_rd, 0), rdK((t + 1) & 1, kt_rd, 1)]
            else:
                kb = KB[(t + 1) & 1]; vb = VB[t & 1]
                rd = [rdV((t + 1) & 1, kt_rd, 0), rdV((t + 1) & 1, kt_rd, 1)]
            M = [mfma32(S[o], kb, Q[o], NM[o]), mfma32(S[o], kb+4, Q[o]+4, S[o]),
                 mfma32(O[o], vb, P[o], O[o]), mfma32(O[o], vb+4, P[o]+4, O[o]),
                 f"v_smfmac_f32_16x16x64_bf16 {vr(L[o],4)}, {vr(ONES,4)}, {vr(P[o],8)}, v{IDX}"]
            g = [[e(0), e(1), e(2)], [c(0), e(3), e(4), e(5)], [c(1), e(6), e(7), c(2), e(8)],
                 [c(3), e(9), e(10), e(11), c(4)], [e(12), e(13), c(5), e(14), e(15), c(6), c(7)]]
            for i in range(5):
                on = do_qk if i < 2 else do_pv
                if on: A(M[i])
                if i < 2 and do_rd: A(rd[i])
                if i == 3 and chk: A(f"ds_read_b32 v{VT}, v{VLA}")
                if i == 4 and q == 0: A("s_waitcnt lgkmcnt(0)")
                if i == 4 and tail: tail()
                for x in g[i]: A(x)

        S_CNT, S_SL = S_TMP, S_TMP+1
        A(f"s_mov_b32 s{S_CNT}, 15")
        A(f"s_mov_b32 s{S_SL}, 0")
        A(f"s_mov_b32 s{S_TMP+20}, 0")
        def adv():
            A(f"s_add_u32 s{S_SL}, s{S_SL}, {KV_SLOT}")
            A(f"s_and_b32 s{S_SL}, s{S_SL}, {KV_NSLOT*KV_SLOT-1}")
        def flagA():
            A(f"s_lshl_b32 s3, s{S_HP}, 4"); A(f"s_add_u32 s3, s3, s{S_RB}"); A("s_lshl_b32 s3, s3, 5"); A(f"s_add_u32 s3, s3, s{S_WAVE}")
            A("s_lshl_b32 s3, s3, 2"); A(f"s_add_u32 s3, s3, {WS_FA}")
            A(f"v_mov_b32 v164, 0"); A(f"v_mov_b32 v165, s{S_XCC}")
            A("s_waitcnt vmcnt(0)")
            A("s_mov_b64 exec, 1")
            A(f"buffer_store_dword v165, v164, s[{SWS}:{SWS+3}], s3 offen")
            A("s_mov_b64 exec, -1")
            A("s_nop 3")
        fa_at = self.o.get("fa_at", 0)
        if fa_at == 0: flagA()
        unit(0, 0, 1, do_pv=False)
        if fa_at == 1: flagA()
        unit(1, 0, 1)
        if fa_at == 2: flagA()
        unit(0, 1, 2); unit(1, 1, 2)
        S_NEED = S_TMP + 5
        A(f"s_mov_b32 s{S_NEED}, 0")
        def adv2():
            adv()
            A(f"s_add_u32 s{S_NEED}, s{S_NEED}, 1")
        def handshake(tag):
            A(f"v_add_u32 v{VA}, s{S_SL}, v{VBASE}")
            A(f"v_mov_b32 v{VST}, s{S_NEED}")
            A("s_waitcnt lgkmcnt(0)")
            if self.o.get("st2", 1): self.stampit(252)
            A(f"v_readfirstlane_b32 s3, v{VT}")
            A(f"ds_write_b32 v{VPA}, v{VST}")
            A(f"s_cmp_ge_u32 s3, s{S_NEED}")
            A(f"s_cbranch_scc0 L_hs_slow{tag}")
            A.label(f"L_hs_back{tag}")
            if self.o.get("st2", 1): self.stampit(252)
        self.hs = dict(VT=VT, VLA=VLA, S_NEED=S_NEED)
        unit(0, 2, 3); unit(1, 2, 3, tail=adv2, chk=True)
        handshake(0)
        A.raw(".p2align 6")
        A.label("L_attloop")
        unit(0, 3, 0); unit(1, 3, 0)
        unit(0, 4, 1); unit(1, 4, 1)
        unit(0, 5, 2); unit(1, 5, 2)
        unit(0, 6, 3); unit(1, 6, 3, tail=adv2, chk=True)
        handshake(1)
        A(f"s_cmp_eq_u32 s{S_NEED}, {OPS_AT}")
        A("s_cbranch_scc1 L_ops")
        A(f"s_cmp_lt_u32 s{S_NEED}, 16")
        A("s_cbranch_scc1 L_attloop")
        unit(0, 63, 0, do_rd=False); unit(1, 63, 0, do_qk=False, do_rd=False)
        A("s_nop 1")
        A(mfma32(O[1], VB[1], P[1], O[1]))
        A(mfma32(O[1], VB[1]+4, P[1]+4, O[1]))
        A(f"v_smfmac_f32_16x16x64_bf16 {vr(L[1],4)}, {vr(ONES,4)}, {vr(P[1],8)}, v{IDX}")
        self.stampit(252)
        A("s_nop 7")
        A("s_nop 7")
        A.label("L_att_fin")
        for q in range(2): A(f"v_add_f32 v{L[q]}, v{L[q]}, v{L[q]+1}")
        A(f"v_max_f32 v160, v{L[0]}, v{L[1]}")
        A(f"v_add_f32 v161, v{L[0]}, v{L[1]}")
        A("v_mov_b32 v162, 0x53800000")
        A("v_cmp_nlt_f32 vcc, v161, v162")
        A("s_nop 4")
        A("s_cbranch_vccnz L_fallback")
        A.label("L_att_ok")
        for q in range(2): A(f"v_rcp_f32 v{L[q]}, v{L[q]}")
        A("s_nop 0")
        for q in range(2):
            for i in range(16): A(f"v_mul_f32 v{O[q]+i}, v{L[q]}, v{O[q]+i}")
            for i in range(8): A(f"v_cvt_pk_bf16_f32 v{P[q]+i}, v{O[q]+2*i}, v{O[q]+2*i+1}")
        A(f"s_lshl_b32 s3, s{S_RB}, 2")
        A(f"s_and_b32 s4, s{S_WAVE}, 2")
        A("s_add_u32 s3, s3, s4")
        A("s_lshl_b32 s3, s3, 16")
        A(f"s_lshl_b32 s4, s{S_HP}, 1")
        A(f"s_add_u32 s4, s4, s{S_U}")
        A("s_lshl_b32 s4, s4, 11")
        A("s_add_u32 s3, s3, s4")
        A(f"s_add_u32 s3, s3, {WS_O}")
        A("s_add_u32 s4, s3, 65536")
        for q in range(2):
            so = "s3" if q == 0 else "s4"
            A(f"buffer_store_dwordx4 {vr(P[q],4)}, v{VL16}, s[{SWS}:{SWS+3}], {so} offen sc1")
            A(f"buffer_store_dwordx4 {vr(P[q]+4,4)}, v{VL16}, s[{SWS}:{SWS+3}], {so} offen offset:1024 sc1")
        A(f"v_mov_b32 v14, {L_CNT + 12}"); A("v_mov_b32 v15, 1"); A("s_mov_b64 exec, 1"); A("ds_add_u32 v14, v15"); A("s_mov_b64 exec, -1")
        self.p3_setup()
        self.p3_pre(4)
        A("s_waitcnt vmcnt(0)")
        self.stampit(252)
        def c():
            A(f"s_lshl_b32 s3, s{S_RB}, 4"); A(f"s_add_u32 s3, s3, s{S_HP}"); A("s_lshl_b32 s3, s3, 2"); A(f"s_add_u32 s3, s3, {WS_F3}")
        self.last_arriver(6, lambda: self.set_flag(c), 4)

    def read_tag(self, v, wait=False):
        A = self.A
        A(f"v_mov_b32 v{v}, {L_TAG}"); A(f"ds_read_b32 v{v}, v{v}")
        A(f"s_getreg_b32 s{S_XCC}, hwreg(HW_REG_XCC_ID, 0, 4)")
        A("s_waitcnt lgkmcnt(0)")
        A(f"v_readfirstlane_b32 s{S_TAG}, v{v}")
        A("s_nop 1")
        A(f"s_or_b32 s{S_XCC}, s{S_XCC}, s{S_TAG}")

    def rowmax_to_nm(self, S, NM):
        A = self.A
        for q in range(2):
            s = S[q]; t = 160 + 2 * q
            A(f"v_max3_f32 v{t}, v{s}, v{s+1}, v{s+2}")
            for i in range(3, 15, 2): A(f"v_max3_f32 v{t}, v{t}, v{s+i}, v{s+i+1}")
            A(f"v_max_f32 v{t}, v{t}, v{s+15}")
            A(f"v_mov_b32 v{t+1}, v{t}")
        A("s_nop 1")
        for q in range(2):
            t = 160 + 2 * q
            A(f"v_permlane32_swap_b32 v{t}, v{t+1}")
        A("s_nop 1")
        for q in range(2):
            t = 160 + 2 * q
            A(f"v_max_f32 v{t}, v{t}, v{t+1}")
        for q in range(2):
            t = 160 + 2 * q
            for i in range(16): A(f"v_sub_f32 v{NM[q]+i}, 0, v{t}")

    def fallback(self):
        A = self.A; r = self.r2
        S, O, NM, P, KB, VB, L, ONES, IDX, Q = [r[k] for k in "S O NM P KB VB L ONES IDX Q".split()]
        VL16 = self.VL16
        A.label("L_ops")
        self.p3_operands()
        A("s_branch L_attloop")
        for tag in (0, 1):
            h = self.hs
            A.label(f"L_hs_slow{tag}")
            A(f"s_mov_b32 s96, {SPIN_MAX*16}")
            A.label(f"L_hs_spin{tag}")
            A(f"ds_read_b32 v{h['VT']}, v{h['VLA']}")
            A("s_waitcnt lgkmcnt(0)")
            A(f"v_readfirstlane_b32 s3, v{h['VT']}")
            A("s_sub_u32 s96, s96, 1"); A("s_cmp_eq_u32 s96, 0"); A(f"s_cbranch_scc1 L_hs_back{tag}")
            A(f"s_cmp_ge_u32 s3, s{h['S_NEED']}")
            A(f"s_cbranch_scc1 L_hs_back{tag}")
            A(f"s_branch L_hs_spin{tag}")
        A.label("L_fallback")
        A(f"s_cmp_eq_u32 s{S_TMP+20}, 1")
        A("s_cbranch_scc1 L_att_ok")
        A(f"s_mov_b32 s{S_TMP+20}, 1")
        S_B, S_I, S_O = S_TMP+2, S_TMP+3, S_TMP+4
        A(f"s_lshl_b32 s5, s{S_HP}, 6"); A(f"s_add_u32 s5, s5, {WS_F1}")
        A(f"v_lshlrev_b32 v164, 2, v{self.VLANE}")
        self.poll_val(SWS, 164, "s5", 0xffff, f"s{S_TAG}", 165)
        A(f"s_lshl_b32 s{S_B}, s{S_HP}, 19")
        A(f"s_lshl_b32 s3, s{S_U}, 14")
        A(f"s_add_u32 s{S_B}, s{S_B}, s3")
        def toff():
            A(f"s_lshr_b32 s3, s{S_I}, 2")
            A("s_lshl_b32 s3, s3, 15")
            A(f"s_and_b32 s4, s{S_I}, 3")
            A("s_lshl_b32 s4, s4, 12")
            A("s_add_u32 s3, s3, s4")
            A(f"s_add_u32 s{S_O}, s3, s{S_B}")
        MX = [164, 165]
        A(f"v_mov_b32 v{MX[0]}, 0xff800000")
        A(f"v_mov_b32 v{MX[1]}, 0xff800000")
        A(f"s_mov_b32 s{S_I}, 0")
        A.label("L_fb1")
        toff()
        A(f"buffer_load_dwordx4 {vr(KB[0],4)}, v{VL16}, s[{SWS}:{SWS+3}], s{S_O} offen sc1")
        A(f"buffer_load_dwordx4 {vr(KB[0]+4,4)}, v{VL16}, s[{SWS}:{SWS+3}], s{S_O} offen offset:1024 sc1")
        A("s_waitcnt vmcnt(0)")
        for q in range(2):
            A(mfma32(S[q], KB[0], Q[q], None))
            A(mfma32(S[q], KB[0]+4, Q[q]+4, S[q]))
        A("s_nop 7"); A("s_nop 7")
        for q in range(2):
            for i in range(0, 16, 2): A(f"v_max3_f32 v{MX[q]}, v{MX[q]}, v{S[q]+i}, v{S[q]+i+1}")
        A(f"s_add_u32 s{S_I}, s{S_I}, 1")
        A(f"s_cmp_lt_u32 s{S_I}, 64")
        A("s_cbranch_scc1 L_fb1")
        for q in range(2):
            for i in range(16): A(f"v_mov_b32 v{S[q]+i}, v{MX[q]}")
        self.rowmax_to_nm(S, NM)
        for q in range(2):
            for i in range(16): A(f"v_mov_b32 v{O[q]+i}, 0")
            for i in range(4): A(f"v_mov_b32 v{L[q]+i}, 0")
        A(f"s_mov_b32 s{S_I}, 0")
        A.label("L_fb2")
        toff()
        A(f"buffer_load_dwordx4 {vr(KB[0],4)}, v{VL16}, s[{SWS}:{SWS+3}], s{S_O} offen sc1")
        A(f"buffer_load_dwordx4 {vr(KB[0]+4,4)}, v{VL16}, s[{SWS}:{SWS+3}], s{S_O} offen offset:1024 sc1")
        A(f"buffer_load_dwordx4 {vr(VB[0],4)}, v{VL16}, s[{SWS}:{SWS+3}], s{S_O} offen offset:2048 sc1")
        A(f"buffer_load_dwordx4 {vr(VB[0]+4,4)}, v{VL16}, s[{SWS}:{SWS+3}], s{S_O} offen offset:3072 sc1")
        A("s_waitcnt vmcnt(0)")
        for q in range(2):
            A(mfma32(S[q], KB[0], Q[q], NM[q]))
            A(mfma32(S[q], KB[0]+4, Q[q]+4, S[q]))
        A("s_nop 7"); A("s_nop 7")
        for q in range(2):
            for i in range(16): A(f"v_exp_f32 v{S[q]+i}, v{S[q]+i}")
            A("s_nop 0")
            for i in range(8): A(f"v_cvt_pk_bf16_f32 v{P[q]+i}, v{S[q]+2*i}, v{S[q]+2*i+1}")
        A("s_nop 1")
        for q in range(2):
            A(mfma32(O[q], VB[0], P[q], O[q]))
            A(mfma32(O[q], VB[0]+4, P[q]+4, O[q]))
            A(f"v_smfmac_f32_16x16x64_bf16 {vr(L[q],4)}, {vr(ONES,4)}, {vr(P[q],8)}, v{IDX}")
        A(f"s_add_u32 s{S_I}, s{S_I}, 1")
        A(f"s_cmp_lt_u32 s{S_I}, 64")
        A("s_nop 7"); A("s_nop 7")
        A("s_cbranch_scc1 L_fb2")
        A("s_branch L_att_fin")


    def vm_reset(self): self.vm = []
    def vm_add(self, tag, n=1): self.vm += [tag] * n
    def vm_wait(self, tag):
        idx = [i for i, t in enumerate(self.vm) if t == tag]
        if not idx: return
        n = len(self.vm) - 1 - idx[-1]
        self.A(f"s_waitcnt vmcnt({min(n,63)})")
        self.vm = self.vm[idx[-1]+1:]
    def vm_all(self):
        self.A("s_waitcnt vmcnt(0)"); self.vm = []

    def only(self, u):
        g = self
        class C:
            def __enter__(s_):
                s_.lab = g.A.newlabel("L_only")
                g.A(f"s_cmp_lg_u32 s{S_U}, {u}")
                g.A(f"s_cbranch_scc1 {s_.lab}")
            def __exit__(s_, *a): g.A.label(s_.lab)
        return C()

    def last_arriver(self, cnt_index, body, n=4):
        A = self.A
        lab = A.newlabel("L_last")
        A(f"v_mov_b32 v14, {L_CNT + 4*cnt_index}")
        A("v_mov_b32 v15, 1")
        A("s_mov_b64 exec, 1")
        A("ds_add_rtn_u32 v16, v14, v15")
        A("s_waitcnt lgkmcnt(0)")
        A("s_mov_b64 exec, -1")
        A("v_readfirstlane_b32 s3, v16")
        A("s_nop 1")
        A(f"s_cmp_lg_u32 s3, {n-1}")
        A(f"s_cbranch_scc1 {lab}")
        body()
        A.label(lab)

    def set_flag(self, soff_code):
        A = self.A
        soff_code()
        A("v_mov_b32 v14, 0")
        A(f"v_mov_b32 v15, s{S_TAG}")
        A("s_mov_b64 exec, 1")
        A(f"buffer_store_dword v15, v14, s[{SWS}:{SWS+3}], s3 offen sc1")
        A("s_mov_b64 exec, -1")

    def helper_p1(self):
        A = self.A
        AHEAD = self.o.get("ahead", 3)
        A.label("L_helper")
        A(f"s_sub_u32 s{S_U}, s{S_WAVE}, 4")
        if self.stamp: A("v_mov_b32 v252, 0")
        A("v_mov_b32 v251, v0")
        A("v_lshlrev_b32 v250, 4, v0")
        A("v_lshrrev_b32 v1, 3, v0")
        A("v_lshrrev_b32 v2, 4, v0")
        A("v_and_b32 v3, 7, v0")
        A("v_xor_b32 v4, v2, v3")
        A("v_lshlrev_b32 v4, 4, v4")
        A("v_lshl_add_u32 v10, v1, 11, v4")
        A("v_xor_b32 v11, 64, v10")
        A("v_and_b32 v2, 1, v2")
        A("v_lshlrev_b32 v2, 2, v2")
        A("v_xor_b32 v2, v2, v3")
        A("v_lshlrev_b32 v13, 4, v2")
        A("s_movk_i32 s3, 6144")
        A("v_mul_lo_u32 v5, v1, s3")
        A("v_add_u32 v12, v5, v13")
        S_XO, S_WO, S_K, S_A, S_B = S_TMP, S_TMP+1, S_TMP+2, S_TMP+3, S_TMP+4
        A(f"s_lshl_b32 s{S_XO}, s{S_RB}, 18")
        A(f"s_lshl_b32 s3, s{S_U}, 16")
        A(f"s_add_u32 s{S_XO}, s{S_XO}, s3")
        A(f"s_mul_i32 s{S_WO}, s{S_U}, {16*6144}")
        A(f"s_lshl_b32 s3, s{S_HP}, 7")
        A(f"s_add_u32 s{S_WO}, s{S_WO}, s3")
        S_CLS = S_TMP + 5
        S_TB = S_TMP + 8
        if self.rot == 4:
            tabs = []
            for c in range(4):
                seq = [c]
                for p in range(4):
                    fol = [4*p + k for k in range(4) if k != c]
                    slots = list(fol)
                    if p < 3: slots.insert(c, 4*(p+1) + c)
                    seq += slots
                assert sorted(seq) == list(range(16)), seq
                tabs.append(sum(v << (4*i) for i, v in enumerate(seq)))
            A("s_lshr_b32 s4, s2, 3"); A("s_lshr_b32 s5, s4, 3"); A("s_add_u32 s4, s4, s5"); A("s_and_b32 s4, s4, 3")
            A(f"s_mov_b32 s{S_CLS}, s4")
            A(f"s_mov_b32 s{S_TB}, {hex(tabs[0] & 0xffffffff)}"); A(f"s_mov_b32 s{S_TB+1}, {hex(tabs[0] >> 32)}")
            for c in range(1, 4):
                A(f"s_cmp_eq_u32 s4, {c}")
                A(f"s_cselect_b32 s{S_TB}, {hex(tabs[c] & 0xffffffff)}, s{S_TB}"); A(f"s_cselect_b32 s{S_TB+1}, {hex(tabs[c] >> 32)}, s{S_TB+1}")
        elif self.rot == 0:
            A(f"s_mov_b32 s{S_TB}, 0x76543210"); A(f"s_mov_b32 s{S_TB+1}, 0xfedcba98")
        def kst(dst, s_):
            A(f"s_bfe_u32 s{dst}, s{S_TB + (s_ >> 3)}, {hex((4 << 16) | (4 * (s_ & 7)))}")
        if self.rot in (0, 4): pass
        elif self.rot == 2:
            A("s_lshr_b32 s4, s2, 3")
            A("s_and_b32 s3, s4, 7"); A("s_lshl_b32 s3, s3, 1")
            A("s_lshr_b32 s4, s4, 3"); A("s_lshl_b32 s4, s4, 2")
            A("s_add_u32 s3, s3, s4"); A(f"s_and_b32 s{S_K}, s3, 15")
        if self.rot == 2:
            A(f"s_mov_b32 s6, 0x76543210"); A(f"s_mov_b32 s7, 0xfedcba98")
            A(f"s_lshl_b32 s3, s{S_K}, 2"); A(f"s_lshr_b64 s[{S_TB}:{S_TB+1}], s[6:7], s3")
            A("s_sub_u32 s3, 64, s3"); A("s_lshl_b64 s[6:7], s[6:7], s3")
            A(f"s_cmp_eq_u32 s{S_K}, 0"); A("s_cselect_b64 s[6:7], 0, s[6:7]")
            A(f"s_or_b64 s[{S_TB}:{S_TB+1}], s[{S_TB}:{S_TB+1}], s[6:7]")
        self.vm_reset()
        def issue(s):
            slot = (s % G_NSLOT) * G_STAGE
            kst(S_K, s)
            A(f"s_lshl_b32 s{S_A}, s{S_U}, 12")
            A(f"s_add_u32 s{S_A}, s{S_A}, {slot}")
            A(f"s_lshl_b32 s{S_B}, s{S_K}, 7")
            A(f"s_add_u32 s{S_B}, s{S_B}, s{S_XO}")
            for i in range(4):
                A(f"s_mov_b32 m0, s{S_A}")
                A(f"s_add_u32 s{S_A}, s{S_A}, 1024")
                A(f"buffer_load_dwordx4 v{10+(i&1)}, s[{SX}:{SX+3}], s{S_B} offen lds")
                if i < 3: A(f"s_add_u32 s{S_B}, s{S_B}, 16384")
            A(f"s_lshl_b32 s{S_A}, s{S_U}, 11")
            A(f"s_add_u32 s{S_A}, s{S_A}, {slot+16384}")
            A(f"s_mul_i32 s{S_B}, s{S_K}, {64*6144}")
            A(f"s_add_u32 s{S_B}, s{S_B}, s{S_WO}")
            for q in range(2):
                for seg in range(3):
                    A(f"s_mov_b32 m0, s{S_A}")
                    A(f"s_add_u32 s{S_A}, s{S_A}, {8192 if seg < 2 else (1024-16384) & 0xffffffff}")
                    A(f"buffer_load_dwordx4 v12, s[{SW}:{SW+3}], s{S_B} offen lds")
                    if not (q == 1 and seg == 2):
                        A(f"s_add_u32 s{S_B}, s{S_B}, {2048 if seg < 2 else 8*6144-4096}")
            self.vm_add(("g", s), 10)
        with self.only(3):
            srd(A, SA, P_WR, 2048); srd(A, SB, P_GW, 2048)
            for i, sr_ in enumerate((SA, SA, SB, SB)):
                A(f"s_mov_b32 m0, {L_WR + (i >> 1) * 2048}"); A("s_nop 0")
                A(f"buffer_load_dwordx4 v250, s[{sr_}:{sr_+3}], 0 offen offset:{(i & 1) * 1024} lds")
            A(f"s_and_b32 s3, s{S_HP}, 1"); A("s_lshl_b32 s3, s3, 6")
            A("v_xor_b32 v17, s3, v4")
            A(f"v_add_u32 v17, {L_WR}, v17")
            A(f"s_lshl_b32 s3, s{S_HP}, 10")
            A("v_add_u32 v18, s3, v250")
            A("v_mov_b32 v24, 0"); A("v_mov_b32 v25, 0")
        self.stampit(252)
        issue(0); issue(1)
        self.vm_wait(("g", 0))
        self.stampit(252)
        A("s_barrier")
        nxt = 2
        for s in range(16):
            while nxt < 16 and nxt < s + AHEAD and nxt < s + G_NSLOT:
                issue(nxt); nxt += 1
                if nxt == 16:
                    A("v_mov_b32 v27, 0")
                    A(f"buffer_load_dword v26, v27, s[{SDBG}:{SDBG+3}], 0 offen sc1")
                    self.vm_add("tag", 1)
                    A(f"s_lshl_b32 s3, s{S_HP}, 4"); A(f"s_and_b32 s4, s{S_RB}, 8"); A("s_add_u32 s3, s3, s4"); A("s_lshl_b32 s3, s3, 7"); A(f"s_add_u32 s3, s3, {WS_FA}")
                    A("v_and_b32 v9, 7, v251"); A("v_lshlrev_b32 v9, 7, v9")
                    A(f"buffer_load_dword v8, v9, s[{SWS}:{SWS+3}], s3 offen")
                    self.vm_add("touch", 1)
                    A(f"s_lshl_b32 s3, s{S_HP}, 19"); A(f"s_lshl_b32 s4, s{S_RB}, 15"); A("s_add_u32 s3, s3, s4")
                    A(f"s_lshl_b32 s4, s{S_U}, 13"); A("s_add_u32 s3, s3, s4"); A(f"s_add_u32 s3, s3, {WS_KVA}")
                    A("v_lshlrev_b32 v9, 7, v251")
                    if self.o.get("tsplit", 1): A("s_mov_b32 exec_hi, 0")
                    A(f"buffer_load_dword v8, v9, s[{SWS}:{SWS+3}], s3 offen")
                    A("s_mov_b64 exec, -1")
                    self.vm_add("touch", 1)
                if self.o.get("tsplit", 1) and self.rot == 4 and 10 <= nxt <= 13:
                    lab = A.newlabel("L_t")
                    A(f"s_cmp_lg_u32 s{S_CLS}, {nxt-10}"); A(f"s_cbranch_scc1 {lab}")
                    A(f"s_lshl_b32 s3, s{S_HP}, 19"); A(f"s_lshl_b32 s4, s{S_RB}, 15"); A("s_add_u32 s3, s3, s4")
                    A(f"s_lshl_b32 s4, s{S_U}, 13"); A("s_add_u32 s3, s3, s4"); A(f"s_add_u32 s3, s3, {WS_KVA}")
                    A("v_lshlrev_b32 v9, 7, v251")
                    A("s_mov_b32 exec_lo, 0")
                    A(f"buffer_load_dword v8, v9, s[{SWS}:{SWS+3}], s3 offen")
                    A("s_mov_b64 exec, -1")
                    A.label(lab)
            with self.only(3):
                kst(4, s); A("s_lshl_b32 s4, s4, 7")
                A(f"v_add_u32 v19, {(s % G_NSLOT) * G_STAGE}, v18"); A("v_add_u32 v28, s4, v17")
                A("ds_read_b128 v[20:23], v19"); A("ds_read_b128 v[64:67], v28"); A("ds_read_b128 v[68:71], v28 offset:2048")
                A("s_waitcnt lgkmcnt(0)")
                for i in range(4):
                    A(f"v_dot2c_f32_bf16 v24, v{20+i}, v{64+i}")
                    A(f"v_dot2c_f32_bf16 v25, v{20+i}, v{68+i}")
            if s == 15:
                with self.only(0):
                    lab = A.newlabel("L_tagok")
                    save = list(self.vm)
                    self.vm_wait("tag")
                    A("v_readfirstlane_b32 s3, v26")
                    A("s_nop 1")
                    A("s_cmp_lg_u32 s3, 0"); A(f"s_cbranch_scc1 {lab}")
                    self.poll_val(SDBG, 27, "0", 1, 0, 26, ne=True)
                    A.label(lab)
                    A(f"v_mov_b32 v14, {L_TAG}"); A("s_mov_b64 exec, 1"); A("ds_write_b32 v14, v26"); A("s_mov_b64 exec, -1")
                    A("s_waitcnt lgkmcnt(0)")
                    self.vm = save
            if s + 1 < 16: self.vm_wait(("g", s + 1))
            if self.o.get("st1", 0): self.stampit(252)
            A("s_barrier")
        with self.only(0):
            A(f"v_add_u32 v14, {L_CNT}, v250")
            for i in range(4): A(f"v_mov_b32 v{20+i}, 0")
            A("ds_write_b128 v14, v[20:23]"); A("ds_write_b128 v14, v[20:23] offset:1024")
            A("s_waitcnt lgkmcnt(0)")
        A("s_barrier")
        self.read_tag(14)
        self.stampit(252)

    def helper_p2(self):
        A = self.A
        S_KVB = S_TMP
        self.vm_reset()
        A(f"s_lshl_b32 s{S_KVB}, s{S_HP}, 19")
        for u in range(1, 4):
            A(f"s_cmp_eq_u32 s{S_U}, {u}"); A(f"s_cbranch_scc1 L_h2_{u}")
        for u in range(4):
            if u: A.label(f"L_h2_{u}")
            self.helper_p2_wave(u)
            self.p3_setup()
            self.p3_pre(0)
            A("s_branch L_p3")

    def rg_finalize(self):
        A = self.A
        for v in (24, 25):
            A(f"s_nop 1\nv_add_f32_dpp v{v}, v{v}, v{v} quad_perm:[1,0,3,2] row_mask:0xf bank_mask:0xf")
            A(f"s_nop 1\nv_add_f32_dpp v{v}, v{v}, v{v} quad_perm:[2,3,0,1] row_mask:0xf bank_mask:0xf")
            A(f"s_nop 1\nv_add_f32_dpp v{v}, v{v}, v{v} row_half_mirror row_mask:0xf bank_mask:0xf")
        A("v_cvt_pk_bf16_f32 v26, v25, v25")
        A("v_lshlrev_b32 v26, 16, v26")
        A(f"v_mul_f32 v26, {hex(f32bits(-LOG2E))}, v26")
        A("v_exp_f32 v26, v26")
        A("s_nop 0")
        A("v_add_f32 v26, 1.0, v26")
        A("v_rcp_f32 v26, v26")
        A("s_nop 0")
        A("v_cvt_pk_bf16_f32 v26, v26, v26")
        A("v_lshlrev_b32 v26, 16, v26")
        A(f"s_lshl_b32 s3, s{S_RB}, 7"); A(f"s_lshl_b32 s4, s{S_HP}, 3"); A("s_add_u32 s3, s3, s4")
        A("v_lshrrev_b32 v27, 3, v251")
        A("v_add_u32 v27, s3, v27")
        A("v_lshlrev_b32 v14, 2, v27")
        A("s_mov_b32 exec_lo, 0x01010101\ns_mov_b32 exec_hi, 0x01010101")
        A(f"s_mov_b32 s5, {WS_G}")
        A(f"buffer_store_dword v26, v14, s[{SWS}:{SWS+3}], s5 offen sc1")
        A("s_mov_b64 exec, -1")
        A("v_cvt_pk_bf16_f32 v15, v24, v24")
        A("v_lshlrev_b32 v15, 16, v15")
        A("v_ashrrev_i32 v16, 31, v15")
        A("v_or_b32 v16, 0x80000000, v16")
        A("v_and_b32 v16, 0xffff0000, v16")
        A("v_xor_b32 v15, v15, v16")
        A("v_sub_u32 v27, 2047, v27")
        A("v_or_b32 v15, v15, v27")
        A("s_nop 1")
        A("v_readlane_b32 s3, v15, 0")
        for i in range(1, 8):
            A(f"v_readlane_b32 s4, v15, {8*i}")
            A("s_nop 1")
            A("s_max_u32 s3, s3, s4")
        A(f"s_mov_b32 s{S_KEY}, s3")
        self.vm_add("g", 1)
    def rg_count(self):
        A = self.A
        self.vm_wait("g")
        A("s_lshl_b32 s3, s2, 3"); A(f"s_add_u32 s3, s3, {WS_KEYS}")
        A("v_mov_b32 v14, 0"); A(f"v_mov_b32 v16, s{S_KEY}"); A(f"v_mov_b32 v17, s{S_TAG}")
        A("s_mov_b64 exec, 1")
        A(f"buffer_store_dwordx2 v[16:17], v14, s[{SWS}:{SWS+3}], s3 offen sc1")
        A("s_mov_b64 exec, -1")
        self.vm_add("key")

    def lds_spin_ge(self, addr, stride, n, want, sleep=2, bound=None):
        A = self.A
        lab = A.newlabel("L_spin"); done = A.newlabel("L_spind")
        A(f"v_min_u32 v14, {n-1}, v251")
        if stride > 1: A(f"v_mul_u32_u24 v14, {stride}, v14")
        A(f"v_add_u32 v14, {addr}, v14")
        A(f"s_mov_b32 s96, {bound or SPIN_MAX*16}")
        A.label(lab)
        A("ds_read_b32 v16, v14")
        A("s_waitcnt lgkmcnt(0)")
        A(f"v_cmp_gt_u32 vcc, {want}, v16")
        A("s_sub_u32 s96, s96, 1"); A("s_cmp_eq_u32 s96, 0"); A(f"s_cbranch_scc1 {done}")
        A("s_nop 2")
        A(f"s_cbranch_vccz {done}")
        A(f"s_sleep {sleep}")
        A(f"s_branch {lab}")
        A.label(done)

    def class_tick(self, name, sleep=4):
        A = self.A
        tab = dict(B=[2,3,4,5], W1=[8,9,10,12], W2=[12,13,14,15], A=[3,2,2,3], M=[4,5,3,4], C=[6,6,5,6], D=[9,8,8,8])
        tab.update(self.o.get("ticks", {}))
        t = tab[name]
        A(f"s_bfe_u32 s5, s{S_RB}, 0x20001"); A("s_lshl_b32 s5, s5, 2")
        A(f"s_lshr_b32 s5, {hex(sum(v << (4*i) for i, v in enumerate(t)))}, s5"); A("s_and_b32 s5, s5, 15"); A("s_mul_i32 s6, s5, 10")
        self.lds_spin_ge(L_LAND, 1, 1, "s5", sleep, bound="s6")

    def wo_setup(self):
        A = self.A
        srd(A, SA, P_WO, 1024 * 1024 * 2)
        A("v_lshrrev_b32 v19, 3, v251")
        A("v_lshl_add_u32 v19, v19, 11, v13")
    def issue_wo(self, q):
        A = self.A; S_B = S_TMP + 3
        base = q * 32768
        A("s_lshr_b32 s3, s2, 3"); A("s_and_b32 s3, s3, 15"); A("s_lshl_b32 s3, s3, 7")
        A(f"s_add_u32 s{S_B}, s3, {q*256*2048}")
        for i in range(32):
            A(f"s_mov_b32 m0, {base + i*1024}")
            if i: A(f"s_add_u32 s{S_B}, s{S_B}, 16384")
            else: A("s_nop 0")
            A(f"buffer_load_dwordx4 v19, s[{SA}:{SA+3}], s{S_B} offen lds")

    def helper_p2_wave(self, u):
        if u == 0: self.kv_loader()
        elif u == 1: self.b_wave()
        else: self.moe_wave(u - 2)

    def kv_loader(self):
        A = self.A
        S_KVB, S_B, S_MODE = S_TMP, S_TMP+3, S_TMP+4
        def landed(v):
            A(f"v_mov_b32 v14, {L_LAND}"); A(f"v_mov_b32 v15, {v}")
            A("ds_write_b32 v14, v15")
        A("v_lshrrev_b32 v17, 3, v251"); A(f"v_add_u32 v17, s{S_RB}, v17"); A("v_and_b32 v17, 7, v17")
        A(f"s_and_b32 s4, s{S_RB}, 8"); A(f"s_lshl_b32 s5, s{S_HP}, 4"); A("s_add_u32 s4, s4, s5")
        A("v_add_u32 v17, s4, v17")
        A("v_and_b32 v18, 3, v251"); A("v_lshlrev_b32 v18, 2, v18"); A("v_lshl_add_u32 v20, v17, 7, v18"); A(f"v_add_u32 v20, {WS_FA}, v20")
        A("v_lshlrev_b32 v17, 2, v17"); A(f"v_add_u32 v17, {WS_F1}, v17")
        A("v_and_b32 v19, 4, v251"); A("v_cmp_eq_u32 vcc, 0, v19")
        A(f"v_mov_b32 v19, s{S_TAG}"); A(f"v_mov_b32 v16, s{S_XCC}")
        A("v_cndmask_b32 v21, v17, v20, vcc"); A("v_cndmask_b32 v22, v19, v16, vcc")
        A(f"s_mov_b64 s[{S_MODE}:{S_MODE+1}], 0")
        def wait_free(need, prev):
            lab = A.newlabel("L_free")
            A("v_min_u32 v14, 3, v251"); A("v_lshlrev_b32 v14, 8, v14"); A(f"v_add_u32 v14, {L_PROG}, v14")
            A("ds_read_b32 v16, v14"); A("s_waitcnt lgkmcnt(0)")
            A(f"v_cmp_gt_u32 vcc, {need}, v16"); A("s_nop 4")
            A(f"s_cbranch_vccz {lab}")
            A("s_waitcnt vmcnt(0)"); landed(prev)
            self.lds_spin_ge(L_PROG, 256, 4, need, 4)
            A.label(lab)
        def poll_block(s_):
            lab = A.newlabel("L_poll"); done = A.newlabel("L_polld")
            A(f"s_bitcmp1_b64 s[{S_MODE}:{S_MODE+1}], {8*s_}"); A(f"s_cbranch_scc1 {done}")
            if s_ >= 4:
                A("s_waitcnt vmcnt(0)"); landed(s_ - 1)
            A(f"s_mov_b32 s96, {SPIN_MAX}")
            A("s_mov_b32 exec_lo, 0x0f0f0f00"); A("s_mov_b32 exec_hi, 0x0f0f0f0f")
            A.label(lab)
            A(f"buffer_load_dword v16, v21, s[{SWS}:{SWS+3}], 0 offen sc1")
            A("s_waitcnt vmcnt(0)")
            A("v_cmp_eq_u32 vcc, v22, v16")
            A("s_sub_u32 s96, s96, 1"); A("s_nop 2")
            A("s_lshr_b64 s[4:5], vcc, 1"); A("s_and_b64 s[4:5], s[4:5], vcc"); A("s_lshr_b64 s[6:7], s[4:5], 2"); A(f"s_and_b64 s[{S_MODE}:{S_MODE+1}], s[4:5], s[6:7]")
            A(f"s_bitcmp1_b64 s[{S_MODE}:{S_MODE+1}], {8*s_}"); A(f"s_cbranch_scc1 {done}")
            A(f"s_bitcmp1_b64 vcc, {8*s_+4}"); A(f"s_cbranch_scc1 {done}")
            A("s_cmp_eq_u32 s96, 0"); A(f"s_cbranch_scc1 {done}")
            A(f"s_cmp_lt_u32 s96, {SPIN_MAX-8}")
            A("s_cselect_b32 exec_lo, 0x1f1f1f00, exec_lo"); A("s_cselect_b32 exec_hi, 0x1f1f1f1f, exec_hi")
            A("s_sleep 1")
            A(f"s_branch {lab}")
            A.label(done)
            A("s_mov_b64 exec, -1")
        for s in range(1, 16):
            if s - 1 == OPS_AT:
                self.lds_spin_ge(L_CNT + 20, 1, 1, 1)
            if s in (8, 12):
                A("s_waitcnt vmcnt(0)"); landed(s - 1)
                g4 = 0 if s < 12 else 4
                A(f"s_lshl_b32 s5, s{S_HP}, 4"); A(f"s_and_b32 s4, s{S_RB}, 8"); A("s_xor_b32 s4, s4, 8"); A("s_add_u32 s5, s5, s4")
                A("s_lshl_b32 s5, s5, 2"); A(f"s_add_u32 s5, s5, {WS_F1 + 4*g4}")
                A("v_lshlrev_b32 v14, 2, v251")
                self.poll_val(SWS, 14, "s5", 0xf, f"s{S_TAG}", 16, sleep=4)
            if s in (2, 3):
                A("s_waitcnt vmcnt(0)"); landed(s - 1)
            if s >= 4: wait_free(s - 3, s - 1)
            if s == 4: self.lds_spin_ge(L_CNT + 16, 1, 1, 1)
            if s <= 7:
                poll_block(s); bit = 8 * s
                A(f"s_add_u32 s3, s{S_RB}, {s}"); A("s_and_b32 s3, s3, 7"); A(f"s_and_b32 s4, s{S_RB}, 8"); A(f"s_or_b32 s{S_B}, s3, s4")
                A(f"s_bitcmp1_b64 s[{S_MODE}:{S_MODE+1}], {bit}")
                A(f"s_cselect_b32 s6, {WS_KVA}, 0")
            else:
                g4 = 0 if s < 12 else 4
                A(f"s_add_u32 s3, s{S_RB}, {s}"); A("s_and_b32 s3, s3, 3"); A(f"s_and_b32 s4, s{S_RB}, 8"); A(f"s_xor_b32 s4, s4, {8 + g4}"); A(f"s_or_b32 s{S_B}, s3, s4")
                A("s_mov_b32 s6, 0")
            self.stampit(252)
            A(f"s_lshl_b32 s{S_B}, s{S_B}, 15"); A(f"s_add_u32 s{S_B}, s{S_B}, s{S_KVB}"); A(f"s_add_u32 s{S_B}, s{S_B}, s6")
            for hb in range(8):
                A(f"s_mov_b32 m0, {(s % KV_NSLOT) * KV_SLOT + hb * 4096}")
                if hb: A(f"s_add_u32 s{S_B}, s{S_B}, 4096")
                else: A("s_nop 0")
                for i in range(4):
                    A(f"buffer_load_dwordx4 v250, s[{SWS}:{SWS+3}], s{S_B} offen offset:{1024*i} sc1 lds")
            if s >= 4:
                A("s_waitcnt vmcnt(32)"); landed(s - 1)
            if s - 1 == OPS_AT: self.p3_operands()
            self.stampit(252)
        self.wo_setup()
        for q, need in ((0, 13), (1, 14), (2, 15)):
            wait_free(need, 16 + q)
            self.issue_wo(q)
            A("s_waitcnt vmcnt(32)"); landed(16 + q)
            self.stampit(252)
        A("s_waitcnt vmcnt(0)"); landed(19)

    def b_wave(self):
        A = self.A
        S_KVB, S_BS = S_TMP, S_TMP + 9
        BR = 64
        for i in range(32):
            if i in (12, 24): A("s_waitcnt lgkmcnt(4)")
            A(f"ds_read_b128 {vr(BR+4*i,4)}, v250 offset:{1024*i}")
        A(f"s_lshl_b32 s{S_BS}, s{S_RB}, 15"); A(f"s_add_u32 s{S_BS}, s{S_BS}, s{S_KVB}")
        A(f"v_mov_b32 v14, {L_CNT + 16}"); A("v_mov_b32 v15, 1")
        A("s_waitcnt lgkmcnt(0)")
        A("ds_write_b32 v14, v15")
        self.class_tick("B")
        self.stampit(252)
        for i in range(32):
            A(f"buffer_store_dwordx4 {vr(BR+4*i,4)}, v250, s[{SWS}:{SWS+3}], s{S_BS} offen offset:{1024*(i&3)} sc1")
            if (i & 3) == 3: A(f"s_add_u32 s{S_BS}, s{S_BS}, 4096")
        A("s_waitcnt vmcnt(0)")
        def c():
            A(f"s_lshl_b32 s3, s{S_HP}, 4"); A(f"s_add_u32 s3, s3, s{S_RB}"); A("s_lshl_b32 s3, s3, 2"); A(f"s_add_u32 s3, s3, {WS_F1}")
        self.set_flag(c)
        self.stampit(252)
        self.wo_setup()
        self.class_tick("W1")
        A("s_lshr_b32 s3, s2, 3"); A("s_and_b32 s3, s3, 15"); A("s_lshl_b32 s3, s3, 7"); A(f"s_add_u32 s3, s3, {3*256*2048}")
        for i in range(32):
            A(f"buffer_load_dwordx4 {vr(32+4*i,4)}, v19, s[{SA}:{SA+3}], s3 offen"); A("s_add_u32 s3, s3, 16384")
        self.stampit(252)
        self.lds_spin_ge(L_LAND, 1, 1, OPS_AT, 16)
        self.p3_operands()
        A(f"v_add_u32 v20, {3*32768}, v250")
        A("s_waitcnt vmcnt(0)")
        self.lds_spin_ge(L_PROG, 256, 4, 16, 2)
        for i in range(32):
            if i in (12, 24): A("s_waitcnt lgkmcnt(4)")
            A(f"ds_write_b128 v20, {vr(32+4*i,4)} offset:{1024*i}")
        A(f"v_mov_b32 v14, {L_CNT}"); A("v_mov_b32 v15, 1")
        A("s_waitcnt lgkmcnt(0)")
        A("ds_write_b32 v14, v15")
        self.stampit(252)

    def moe_wave(self, m):
        A = self.A
        self.m = m
        self.vm_reset()
        if m == 1:
            self.rg_finalize(); self.rg_count()
        else:
            self.lds_spin_ge(L_LAND, 1, 1, self.o.get("key_at", 4), 4, bound=40)
            self.get_key()
            A(f"v_mov_b32 v14, {L_CNT + 28}"); A(f"v_mov_b32 v15, s{S_KEY}"); A("ds_write_b32 v14, v15"); A("s_waitcnt lgkmcnt(0)")
            A(f"v_mov_b32 v14, {L_CNT + 20}"); A("v_mov_b32 v15, 1"); A("ds_write_b32 v14, v15")
        if self.moe:
            steps = self.moe_steps()
            for k in ("gate_issue", "key", "gate_mma", "up_mma", "h", "down_mma"):
                steps[k](); self.stampit(252)
        self.lds_spin_ge(L_LAND, 1, 1, OPS_AT, 16)
        self.p3_operands()

    def poll_val(self, srd_, voff, soff, mask, want, vtmp, ne=False, sleep=1):
        A = self.A
        lab = A.newlabel("L_poll"); done = A.newlabel("L_polld")
        A(f"s_mov_b32 s96, {SPIN_MAX}")
        A(f"s_mov_b32 s97, {want}")
        A(f"s_mov_b64 exec, {hex(mask)}")
        A.label(lab)
        if soff.startswith("s"):
            A(f"buffer_load_dword v{vtmp}, v{voff}, s[{srd_}:{srd_+3}], {soff} offen sc1")
        else:
            A(f"buffer_load_dword v{vtmp}, v{voff}, s[{srd_}:{srd_+3}], 0 offen offset:{soff} sc1")
        A("s_waitcnt vmcnt(0)")
        A(f"v_cmp_{'eq' if ne else 'ne'}_u32 vcc, s97, v{vtmp}")
        A("s_sub_u32 s96, s96, 1")
        A("s_cmp_eq_u32 s96, 0")
        A(f"s_cbranch_scc1 {done}")
        A("s_nop 2")
        A(f"s_cbranch_vccz {done}")
        A(f"s_sleep {sleep}")
        A(f"s_branch {lab}")
        A.label(done)
        A("s_mov_b64 exec, -1")
        self.vm = []

    def get_key(self):
        A = self.A
        lab = A.newlabel("L_poll"); done = A.newlabel("L_polld")
        A(f"s_mov_b32 s96, {SPIN_MAX}")
        A(f"s_mov_b32 s5, {WS_KEYS}")
        A.label(lab)
        A(f"buffer_load_dwordx4 v[20:23], v250, s[{SWS}:{SWS+3}], s5 offen sc1")
        A(f"buffer_load_dwordx4 v[24:27], v250, s[{SWS}:{SWS+3}], s5 offen offset:1024 sc1")
        A("s_waitcnt vmcnt(0)")
        for i, v in enumerate((21, 23, 25, 27)): A(f"v_xor_b32 v{28+i}, s{S_TAG}, v{v}")
        A("v_or3_b32 v28, v28, v29, v30"); A("v_or_b32 v28, v28, v31")
        A("v_cmp_ne_u32 vcc, 0, v28")
        A("s_sub_u32 s96, s96, 1"); A("s_cmp_eq_u32 s96, 0"); A(f"s_cbranch_scc1 {done}")
        A("s_nop 2")
        A(f"s_cbranch_vccz {done}")
        A("s_sleep 16")
        A(f"s_branch {lab}")
        A.label(done)
        self.vm = []
        self.key_reduce(20, 16)

    def key_reduce(self, v, t):
        A = self.A
        A(f"v_max_u32 v{t}, v{v}, v{v+2}"); A(f"v_max3_u32 v{t}, v{t}, v{v+4}, v{v+6}")
        for d in ("quad_perm:[1,0,3,2]", "quad_perm:[2,3,0,1]", "row_half_mirror", "row_mirror"):
            A("s_nop 1"); A(f"v_max_u32_dpp v{t}, v{t}, v{t} {d} row_mask:0xf bank_mask:0xf")
        A("s_nop 1")
        A(f"v_readlane_b32 s{S_KEY}, v{t}, 0")
        for l in (16, 32, 48):
            A(f"v_readlane_b32 s3, v{t}, {l}"); A("s_nop 1"); A(f"s_max_u32 s{S_KEY}, s{S_KEY}, s3")
        A(f"s_and_b32 s3, s{S_KEY}, 2047")
        A(f"s_sub_u32 s{S_SEL}, 2047, s3")

    def moe_dma(self, items):
        A = self.A
        for k, (sr_, sreg, off, stride, vreg) in enumerate(items):
            A(f"s_add_u32 s3, s{sreg}, {off}")
            for i in range(4):
                A(f"s_mov_b32 m0, {L_R2 + self.m*12288 + k*4096 + i*1024}")
                if i: A(f"s_add_u32 s3, s3, {8*stride}")
                else: A("s_nop 0")
                A(f"buffer_load_dwordx4 v{vreg}, s[{sr_}:{sr_+3}], s3 offen {self.o.get('moefl', 'nt')} lds")

    def moe_frags(self, k, dst):
        A = self.A
        for c in range(4):
            A(f"ds_read_b64_tr_b16 {vr(dst+4*c,2)}, v17 offset:{k*4096 + c*32}")
            A(f"ds_read_b64_tr_b16 {vr(dst+4*c+2,2)}, v17 offset:{k*4096 + 2048 + c*32}")
        A("s_waitcnt lgkmcnt(0)")
    def moe_mma(self, xf, bf, acc, first):
        for c in range(4): self.A(mfma16(acc + 4*c, xf, bf + 4*c, None if first else acc + 4*c))
    def moe_pick(self, ACC, res):
        A = self.A
        A("v_lshrrev_b32 v15, 4, v251")
        A("s_nop 7")
        A("v_cmp_eq_u32 vcc, 1, v15"); A(f"v_mov_b32 v{res}, v{ACC}"); A("s_nop 0"); A(f"v_cndmask_b32 v{res}, v{res}, v{ACC+4}, vcc")
        A("v_cmp_eq_u32 vcc, 2, v15"); A("s_nop 1"); A(f"v_cndmask_b32 v{res}, v{res}, v{ACC+8}, vcc")
        A("v_cmp_eq_u32 vcc, 3, v15"); A("s_nop 1"); A(f"v_cndmask_b32 v{res}, v{res}, v{ACC+12}, vcc")

    def moe_steps(self):
        A = self.A; m = self.m
        S_M, S_MD, SC = S_TMP + 6, S_TMP + 7, 92
        XF = 40; ACC = 72; ACU = 56; BF = 128; DF = 176
        gk0 = 128 * m
        dst = (4, 3)[m]; dk0 = 128 * m
        def tick(i): self.class_tick("AMCD"[i])
        G = lambda k: (SA, S_M, k*32*7168, 7168, 18)
        U = lambda k: (SB, S_M, k*32*7168, 7168, 18)
        D = lambda k: (SC, S_MD, k*32*2048, 2048, 19)
        def st_gate_issue():
            srd(A, SA, P_WG, 1024 * 3584 * 2); srd(A, SB, P_WU, 1024 * 3584 * 2); srd(A, SC, P_WD, 3584 * 1024 * 2)
            A("s_cmp_ge_u32 s2, 224")
            A(f"s_cselect_b32 s{SA+2}, 0, s{SA+2}"); A(f"s_cselect_b32 s{SB+2}, 0, s{SB+2}")
            A("v_lshrrev_b32 v19, 3, v251"); A("s_movk_i32 s3, 7168"); A("v_mul_lo_u32 v18, v19, s3")
            A("v_and_b32 v15, 7, v251"); A("v_lshl_add_u32 v18, v15, 4, v18")
            A("v_lshlrev_b32 v19, 11, v19"); A("v_lshl_add_u32 v19, v15, 4, v19")
            A("v_lshrrev_b32 v17, 2, v251"); A("v_lshlrev_b32 v17, 7, v17")
            A("v_and_b32 v15, 3, v251"); A("v_lshl_add_u32 v17, v15, 3, v17")
            A(f"v_add_u32 v17, {L_R2 + m*12288}, v17")
            A("s_and_b32 s3, s2, 3"); A("s_lshl_b32 s3, s3, 8"); A(f"s_add_u32 s3, s3, {gk0}")
            A(f"s_mul_i32 s{S_M}, s3, 7168")
            A("s_lshr_b32 s3, s2, 2"); A("s_lshl_b32 s3, s3, 7"); A(f"s_add_u32 s{S_M}, s{S_M}, s3")
            A("s_lshr_b32 s3, s2, 4"); A("s_mul_i32 s3, s3, 224"); A(f"s_add_u32 s3, s3, {dk0}")
            A(f"s_lshl_b32 s{S_MD}, s3, 11")
            A("s_and_b32 s3, s2, 15"); A("s_lshl_b32 s3, s3, 7"); A(f"s_add_u32 s{S_MD}, s{S_MD}, s3")
            tick(0)
            self.moe_dma([G(0), G(1), G(2)])
        def st_key():
            self.lds_spin_ge(L_CNT + 20, 1, 1, 1, 4)
            A(f"v_mov_b32 v14, {L_CNT + 28}"); A("ds_read_b32 v14, v14"); A("s_waitcnt vmcnt(0) lgkmcnt(0)")
            A(f"v_readfirstlane_b32 s{S_KEY}, v14"); A("s_nop 1")
            A(f"s_and_b32 s3, s{S_KEY}, 2047"); A(f"s_sub_u32 s{S_SEL}, 2047, s3")
            A("v_lshrrev_b32 v15, 4, v251"); A("v_lshlrev_b32 v15, 3, v15")
            A("s_and_b32 s3, s2, 3"); A("s_lshl_b32 s3, s3, 9"); A(f"s_add_u32 s3, s3, {gk0*2}")
            A(f"s_lshl_b32 s4, s{S_SEL}, 11"); A("s_add_u32 s3, s3, s4")
            for i in range(8):
                A(f"buffer_load_dwordx2 {vr(XF+2*i,2)}, v15, s[{SX}:{SX+3}], s3 offen offset:{32*i}")
            for k in range(3): self.moe_frags(k, BF + 16*k)
            tick(1)
            self.moe_dma([G(3), U(0), U(1)])
            A("s_waitcnt vmcnt(12)")
            for k in range(3): self.moe_mma(XF + 4*k, BF + 16*k, ACC, k == 0)
        def st_gate_mma():
            A("s_waitcnt vmcnt(0)")
            for k in range(3): self.moe_frags(k, BF + 16*k)
            tick(2)
            self.moe_dma([U(2), U(3), D(0)])
            self.moe_mma(XF + 12, BF, ACC, False)
            self.moe_mma(XF, BF + 16, ACU, True); self.moe_mma(XF + 4, BF + 32, ACU, False)
            self.moe_pick(ACC, 90)
        def st_up_mma():
            A("s_waitcnt vmcnt(0)")
            self.moe_frags(0, BF); self.moe_frags(1, BF + 16); self.moe_frags(2, DF)
            self.moe_mma(XF + 8, BF, ACU, False); self.moe_mma(XF + 12, BF + 16, ACU, False)
            self.moe_pick(ACU, 91)
            A("v_lshlrev_b32 v14, 2, v251"); A(f"v_add_u32 v15, {L_PART + m*512}, v14")
            A("ds_write_b32 v15, v90"); A("ds_write_b32 v15, v91 offset:256")
            A("s_waitcnt lgkmcnt(0)")
            def fin():
                lab = A.newlabel("L_skip"); A("s_cmp_ge_u32 s2, 224"); A(f"s_cbranch_scc1 {lab}")
                A(f"v_lshlrev_b32 v14, 2, v251"); A(f"v_add_u32 v15, {L_PART}, v14")
                A("ds_read_b32 v92, v15"); A("ds_read_b32 v94, v15 offset:256"); A("ds_read_b32 v96, v15 offset:512"); A("ds_read_b32 v97, v15 offset:768")
                A(f"v_mov_b32 v93, s{S_TAG}"); A(f"v_mov_b32 v95, s{S_TAG}"); A("v_lshlrev_b32 v14, 3, v251")
                A("s_waitcnt lgkmcnt(0)")
                A("v_add_f32 v92, v92, v96"); A("v_add_f32 v94, v94, v97")
                A("s_and_b32 s3, s2, 3"); A(f"s_mul_i32 s3, s3, {2*3584*8}"); A("s_lshr_b32 s4, s2, 2"); A("s_lshl_b32 s4, s4, 9")
                A("s_add_u32 s3, s3, s4"); A(f"s_add_u32 s3, s3, {WS_GU}"); A(f"s_add_u32 s4, s3, {3584*8}")
                A(f"buffer_store_dwordx2 v[92:93], v14, s[{SWS}:{SWS+3}], s3 offen sc1")
                A(f"buffer_store_dwordx2 v[94:95], v14, s[{SWS}:{SWS+3}], s4 offen sc1")
                A.label(lab)
            self.last_arriver(1, fin, 2)
            tick(3)
            self.moe_dma([D(k) for k in range(1, dst)])
            A("s_waitcnt vmcnt(0)")
            for k in range(1, dst): self.moe_frags(k - 1, DF + 16*k)
        def st_h():
            self.lds_spin_ge(L_LAND, 1, 1, self.o.get("h_at", 11), 8)
            A("s_lshr_b32 s3, s2, 4"); A("s_mul_i32 s3, s3, 224"); A(f"s_add_u32 s3, s3, {dk0}"); A("s_lshl_b32 s3, s3, 3")
            A(f"v_min_u32 v14, {16*dst-1}, v251"); A("v_lshlrev_b32 v14, 4, v14"); A("v_add_u32 v14, s3, v14")
            lab = A.newlabel("L_poll"); done = A.newlabel("L_polld")
            A(f"s_mov_b32 s96, {SPIN_MAX}")
            A.label(lab)
            for kq in range(4):
                for k in range(2):
                    A(f"s_mov_b32 s5, {WS_GU + (kq*2+k)*3584*8}")
                    A(f"buffer_load_dwordx4 {vr(96+8*kq+4*k,4)}, v14, s[{SWS}:{SWS+3}], s5 offen sc1")
            A("s_waitcnt vmcnt(0)")
            A(f"v_xor_b32 v16, s{S_TAG}, v97")
            for i in range(1, 16):
                A(f"v_xor_b32 v17, s{S_TAG}, v{97+2*i}"); A("v_or_b32 v16, v16, v17")
            A("v_cmp_ne_u32 vcc, 0, v16")
            A("s_sub_u32 s96, s96, 1"); A("s_cmp_eq_u32 s96, 0"); A(f"s_cbranch_scc1 {done}")
            A("s_nop 2")
            A(f"s_cbranch_vccz {done}")
            A("s_sleep 24")
            A(f"s_branch {lab}")
            A.label(done)
        def st_down_mma():
            for k, o in enumerate((0, 2, 4, 6)):
                A(f"v_add_f32 v{72+k}, v{96+o}, v{104+o}"); A(f"v_add_f32 v{80+k}, v{112+o}, v{120+o}"); A(f"v_add_f32 v{72+k}, v{72+k}, v{80+k}")
            A("v_cvt_pk_bf16_f32 v76, v72, v73"); A("v_cvt_pk_bf16_f32 v77, v74, v75")
            A("v_lshlrev_b32 v72, 16, v76"); A("v_and_b32 v73, 0xffff0000, v76")
            A("v_lshlrev_b32 v74, 16, v77"); A("v_and_b32 v75, 0xffff0000, v77")
            for k in range(2): A(f"v_mul_f32 v{76+k}, {hex(f32bits(-LOG2E))}, v{72+k}")
            for k in range(2): A(f"v_exp_f32 v{76+k}, v{76+k}")
            A("s_nop 0")
            for k in range(2): A(f"v_add_f32 v{76+k}, 1.0, v{76+k}")
            for k in range(2): A(f"v_rcp_f32 v{76+k}, v{76+k}")
            A("s_nop 0")
            for k in range(2): A(f"v_mul_f32 v{76+k}, v{72+k}, v{76+k}")
            A("v_cvt_pk_bf16_f32 v76, v76, v77")
            A("v_lshlrev_b32 v72, 16, v76"); A("v_and_b32 v73, 0xffff0000, v76")
            A("v_mul_f32 v72, v72, v74"); A("v_mul_f32 v73, v73, v75")
            A("v_cvt_pk_bf16_f32 v74, v72, v73")
            A("v_lshlrev_b32 v14, 2, v251"); A(f"v_add_u32 v14, {L_H + m*256}, v14")
            A("ds_write_b32 v14, v74")
            A("v_lshrrev_b32 v15, 4, v251"); A("v_lshlrev_b32 v15, 3, v15"); A(f"v_add_u32 v15, {L_H + m*256}, v15")
            A("s_waitcnt lgkmcnt(0)")
            for i in range(2 * dst): A(f"ds_read_b64 {vr(XF+2*i,2)}, v15 offset:{32*i}")
            A("s_waitcnt lgkmcnt(0)")
            for k in range(dst): self.moe_mma(XF + 4*k, DF + 16*k, ACC, k == 0)
            self.moe_pick(ACC, 90)
            A("v_lshlrev_b32 v14, 2, v251"); A(f"v_add_u32 v15, {L_PART + 1536 + m*256}, v14")
            A("ds_write_b32 v15, v90")
            A("s_waitcnt lgkmcnt(0)")
            def fin():
                A(f"v_lshlrev_b32 v14, 2, v251"); A(f"v_add_u32 v15, {L_PART + 1536}, v14")
                A("ds_read_b32 v92, v15"); A("ds_read_b32 v94, v15 offset:256")
                A(f"v_mov_b32 v93, s{S_TAG}"); A("v_lshlrev_b32 v14, 3, v251")
                A("s_waitcnt lgkmcnt(0)")
                A("v_add_f32 v92, v92, v94")
                A("s_lshr_b32 s3, s2, 4"); A("s_lshl_b32 s3, s3, 13"); A("s_and_b32 s4, s2, 15"); A("s_lshl_b32 s4, s4, 9")
                A("s_add_u32 s3, s3, s4"); A(f"s_add_u32 s3, s3, {WS_YP}")
                A(f"buffer_store_dwordx2 v[92:93], v14, s[{SWS}:{SWS+3}], s3 offen sc1")
            self.last_arriver(2, fin, 2)
        return dict(gate_issue=st_gate_issue, key=st_key, gate_mma=st_gate_mma, up_mma=st_up_mma, h=st_h, down_mma=st_down_mma)

    def p3_operands(self):
        A = self.A
        VL16, VLANE = 250, 251
        S_RT, S_CT, S_OB, S_R = S_TMP+10, S_TMP+11, S_TMP+12, S_TMP+13
        XR, GR, VOUT = 172, 170, 171
        A("s_and_b32 s3, s2, 7"); A("s_lshl_b32 s3, s3, 1"); A("s_lshr_b32 s4, s2, 7"); A(f"s_add_u32 s{S_RT}, s3, s4")
        A("s_lshr_b32 s3, s2, 3"); A(f"s_and_b32 s{S_CT}, s3, 15")
        A(f"s_and_b32 s3, s{S_WAVE}, 3"); A(f"s_lshl_b32 s4, s{S_RT}, 2"); A(f"s_add_u32 s{S_R}, s3, s4")
        A(f"v_and_b32 v180, 31, v{VLANE}")
        A(f"s_lshl_b32 s3, s{S_R}, 5"); A("v_add_u32 v180, s3, v180")
        A(f"v_lshrrev_b32 v181, 5, v{VLANE}")
        A(f"s_lshr_b32 s4, s{S_WAVE}, 2"); A("s_lshl_b32 s4, s4, 6"); A(f"s_lshl_b32 s5, s{S_CT}, 7"); A("s_add_u32 s4, s4, s5")
        A("v_lshlrev_b32 v182, 11, v180"); A("v_add_u32 v182, s4, v182")
        A(f"v_lshl_add_u32 v{VOUT}, v181, 4, v182")
        for G in range(2): A(f"buffer_load_dwordx4 {vr(XR+4*G,4)}, v{VOUT}, s[{SX}:{SX+3}], 0 offen offset:{32*G}")
        A("v_lshlrev_b32 v183, 2, v180"); A(f"s_mov_b32 s5, {WS_G}")
        A(f"buffer_load_dword v{GR}, v183, s[{SWS}:{SWS+3}], s5 offen sc1")
        if hasattr(self, "vm"): self.vm_add("p3op", 6)

    def p3_setup(self):
        A = self.A
        VL16, VLANE = 250, 251
        S_RT, S_CT, S_OB, S_R = S_TMP+10, S_TMP+11, S_TMP+12, S_TMP+13
        VK, VS = 186, 187
        srd(A, SB, P_OUT, 2048 * 1024 * 2)
        A(f"v_bfe_u32 v188, v{VLANE}, 2, 2"); A("v_lshl_add_u32 v188, v181, 2, v188"); A("v_lshlrev_b32 v188, 7, v188")
        A(f"v_and_b32 v189, 3, v{VLANE}"); A("v_lshl_add_u32 v188, v189, 3, v188")
        A(f"v_bfe_u32 v189, v{VLANE}, 4, 1"); A("v_lshl_add_u32 v188, v189, 5, v188")
        A(f"s_lshr_b32 s4, s{S_WAVE}, 2")
        A(f"v_bfe_u32 v189, v{VLANE}, 3, 1"); A("v_xor_b32 v189, s4, v189")
        A(f"v_lshl_add_u32 v{VK}, v189, 6, v188")
        A("s_lshl_b32 s5, s4, 16"); A(f"v_add_u32 v{VK}, s5, v{VK}")
        A(f"v_xor_b32 v{VS}, 64, v{VK}")
        A(f"s_lshl_b32 s{S_OB}, s{S_R}, 16"); A("s_lshl_b32 s5, s4, 15"); A(f"s_add_u32 s{S_OB}, s{S_OB}, s5"); A(f"s_add_u32 s{S_OB}, s{S_OB}, {WS_O}")

    def p3_pre(self, nwait):
        A = self.A
        XR, T2 = 172, 128
        A(f"v_mov_b32 v185, {L_CNT + 28}"); A("ds_read_b32 v185, v185")
        A(f"s_waitcnt vmcnt({nwait}) lgkmcnt(0)")
        A(f"v_readfirstlane_b32 s{S_KEY}, v185")
        for G in (0, 2):
            A(f"v_permlane32_swap_b32 v{XR+2*G}, v{XR+2*G+2}"); A(f"v_permlane32_swap_b32 v{XR+2*G+1}, v{XR+2*G+3}")
        A(f"s_and_b32 s3, s{S_KEY}, 2047"); A(f"s_sub_u32 s{S_SEL}, 2047, s3")
        A("v_sub_f32 v189, 1.0, v170"); A("v_cvt_pk_bf16_f32 v189, v189, v189"); A("v_lshlrev_b32 v189, 16, v189")
        for G in range(4):
            for d in range(2):
                x = XR + 2*G + d; o = T2 + 4*G + 2*d
                A(f"v_lshlrev_b32 v{o}, 16, v{x}"); A(f"v_and_b32 v{o+1}, 0xffff0000, v{x}")
        for r in range(17, 32): A(f"v_mov_b32 v{r}, 0")
        for r in range(14): A(f"v_mov_b32 v{r}, 0")

    def p3(self):
        A = self.A
        A.label("L_p3")
        VL16, VLANE = 250, 251
        S_RT, S_CT, S_OB, S_R = S_TMP+10, S_TMP+11, S_TMP+12, S_TMP+13
        XR, GR, VOUT = 172, 170, 171
        VK, VS = 186, 187
        T2 = 128; YR = 112
        labn = A.newlabel("L_nomoe")
        A(f"s_lshr_b32 s3, s{S_SEL}, 5")
        A(f"s_cmp_lg_u32 s3, s{S_R}")
        A(f"s_cbranch_scc1 {labn}")
        if self.moe:
            A(f"v_and_b32 v14, 31, v{VLANE}"); A("v_lshlrev_b32 v14, 3, v14"); A("v_lshl_add_u32 v14, v181, 16, v14")
            A(f"s_lshr_b32 s4, s{S_WAVE}, 2"); A("s_lshl_b32 s4, s4, 8"); A(f"s_lshl_b32 s5, s{S_CT}, 9"); A("s_add_u32 s4, s4, s5"); A(f"s_add_u32 s6, s4, {WS_YP}")
            lab = A.newlabel("L_poll"); done = A.newlabel("L_polld")
            A(f"s_mov_b32 s96, {SPIN_MAX}")
            A.label(lab)
            A("s_mov_b32 s4, s6")
            for i in range(8):
                A(f"buffer_load_dwordx2 {vr(32+2*i,2)}, v14, s[{SWS}:{SWS+3}], s4 offen sc1")
                A("s_add_u32 s4, s4, 8192")
            A("s_waitcnt vmcnt(0)")
            A(f"v_xor_b32 v16, s{S_TAG}, v33")
            for i in range(1, 8):
                A(f"v_xor_b32 v17, s{S_TAG}, v{33+2*i}"); A("v_or_b32 v16, v16, v17")
            A("v_cmp_ne_u32 vcc, 0, v16")
            A("s_sub_u32 s96, s96, 1"); A("s_cmp_eq_u32 s96, 0"); A(f"s_cbranch_scc1 {done}")
            A("s_nop 2")
            A(f"s_cbranch_vccz {done}")
            A("s_sleep 4")
            A(f"s_branch {lab}")
            A.label(done)
            A(f"s_and_b32 s3, s{S_KEY}, 0xffff0000"); A("s_bitcmp1_b32 s3, 31"); A("s_mov_b32 s4, 0xffff0000")
            A("s_cselect_b32 s4, 0x80000000, s4"); A("s_xor_b32 s3, s3, s4")
            A(f"v_mov_b32 v30, {hex(f32bits(-LOG2E))}"); A("v_mul_f32 v30, s3, v30"); A("v_exp_f32 v30, v30"); A("s_nop 0")
            A("v_add_f32 v30, 1.0, v30"); A("v_rcp_f32 v30, v30"); A("s_nop 0")
            A("v_cvt_pk_bf16_f32 v30, v30, v30"); A("v_lshlrev_b32 v30, 16, v30")
            A("v_add_f32 v20, v32, v34")
            for i in range(2, 8): A(f"v_add_f32 v20, v20, v{32+2*i}")
            A("v_mov_b32 v21, v20"); A("s_nop 1"); A("v_permlane32_swap_b32 v20, v21"); A("s_nop 1"); A("v_add_f32 v20, v20, v21")
            A("v_cvt_pk_bf16_f32 v20, v20, v20"); A("v_lshlrev_b32 v20, 16, v20"); A("v_mul_f32 v20, v20, v30")
            A("v_cvt_pk_bf16_f32 v20, v20, v20"); A("v_lshlrev_b32 v20, 16, v20")
            A("v_lshlrev_b32 v21, 4, v181")
            for r in range(16):
                A(f"ds_bpermute_b32 v{YR+r}, v21, v20 offset:{(8*(r>>2)+(r&3))*4}")
                if r == 7: A("s_waitcnt lgkmcnt(0)")
            A(f"v_cmp_eq_u32 vcc, s{S_SEL}, v180")
            A("s_waitcnt lgkmcnt(0)")
            for r in range(16): A(f"v_cndmask_b32 v{YR+r}, 0, v{YR+r}, vcc")
            for r in range(16): A(f"v_add_f32 v{T2+r}, v{T2+r}, v{YR+r}")
            for r in (17, 20, 21, 30): A(f"v_mov_b32 v{r}, 0")
        A.label(labn)
        for r in range(16): A(f"v_mul_f32 v{T2+r}, v189, v{T2+r}")
        self.stampit(252)
        OF = [32, 48]; WF = [160, 208]
        S_RDY, S_ISS, S_ROT, S_CNT, S_FL = S_TMP, S_TMP+1, S_TMP+2, S_TMP+3, S_TMP+4
        S_BLK = [S_TMP+5, S_TMP+6]; S_SH = S_TMP + 7
        A(f"s_mov_b32 s{S_RDY}, 0"); A(f"s_mov_b32 s{S_ISS}, 0"); A(f"s_lshr_b32 s{S_ROT}, s{S_CT}, 1")
        A(f"s_lshl_b32 s{S_FL}, s{S_RT}, 6"); A(f"s_add_u32 s{S_FL}, s{S_FL}, {WS_F3}")
        A(f"v_lshlrev_b32 v184, 2, v{VLANE}")
        A(f"v_mov_b32 v183, {L_LAND + 4}")
        A(f"s_lshr_b32 s{S_SH}, s{S_WAVE}, 2"); A(f"s_lshl_b32 s{S_SH}, s{S_SH}, 3")
        def poll():
            lab = A.newlabel("L_poll"); done = A.newlabel("L_polld")
            A(f"s_mov_b32 s96, {SPIN_MAX}")
            A("s_mov_b64 exec, 0xffff")
            A.label(lab)
            A("ds_read_b32 v185, v183"); A("s_waitcnt lgkmcnt(0)")
            A("v_readfirstlane_b32 s3, v185"); A("s_nop 1")
            A(f"s_lshr_b32 s3, s3, s{S_SH}"); A(f"s_and_b32 s{S_RDY}, s3, 0xff")
            A(f"s_andn2_b32 s3, s{S_RDY}, s{S_ISS}")
            A(f"s_cbranch_scc1 {done}")
            A(f"buffer_load_dword v185, v184, s[{SWS}:{SWS+3}], s{S_FL} offen sc1")
            A("s_waitcnt vmcnt(0)")
            A(f"v_cmp_eq_u32 vcc, s{S_TAG}, v185")
            A("s_sub_u32 s96, s96, 1"); A("s_cmp_eq_u32 s96, 0")
            A("s_cselect_b32 s3, 0xffff, 0"); A("s_nop 1")
            A("s_or_b32 s3, vcc_lo, s3"); A("v_mov_b32 v185, s3"); A("ds_or_b32 v183, v185")
            A(f"s_lshr_b32 s3, s3, s{S_SH}"); A(f"s_and_b32 s{S_RDY}, s3, 0xff")
            A(f"s_andn2_b32 s3, s{S_RDY}, s{S_ISS}")
            A(f"s_cbranch_scc1 {done}")
            A(f"s_sleep {self.o.get('p3sleep', 6)}")
            A(f"s_branch {lab}")
            A.label(done)
            A("s_waitcnt lgkmcnt(0)")
            A("s_mov_b64 exec, -1")
        def issue(b):
            A(f"s_andn2_b32 s3, s{S_RDY}, s{S_ISS}")
            A("s_lshl_b32 s4, s3, 8"); A("s_or_b32 s3, s3, s4"); A(f"s_lshr_b32 s3, s3, s{S_ROT}")
            A("s_ff1_i32_b32 s3, s3"); A(f"s_add_u32 s3, s3, s{S_ROT}"); A(f"s_and_b32 s{S_BLK[b]}, s3, 7")
            A(f"s_bitset1_b32 s{S_ISS}, s{S_BLK[b]}")
            A(f"s_lshl_b32 s3, s{S_BLK[b]}, 12"); A(f"s_add_u32 s3, s3, s{S_OB}")
            for i in range(4):
                A(f"buffer_load_dwordx4 {vr(OF[b]+4*i,4)}, v{VL16}, s[{SWS}:{SWS+3}], s3 offen offset:{1024*i} sc1")
        def process(b, younger):
            A(f"s_lshl_b32 s3, s{S_BLK[b]}, 13")
            A(f"v_add_u32 v190, s3, v{VK}"); A(f"v_add_u32 v191, s3, v{VS}")
            def wread(i):
                w = WF[i & 1]
                A(f"ds_read_b64_tr_b16 {vr(w,2)}, v190 offset:{2048*i}"); A(f"ds_read_b64_tr_b16 {vr(w+2,2)}, v190 offset:{2048*i+1024}")
                A(f"ds_read_b64_tr_b16 {vr(w+4,2)}, v191 offset:{2048*i}"); A(f"ds_read_b64_tr_b16 {vr(w+6,2)}, v191 offset:{2048*i+1024}")
            wread(0)
            for i in range(4):
                if i < 3:
                    wread(i + 1); A(f"s_waitcnt vmcnt({younger+3-i}) lgkmcnt(4)")
                else: A(f"s_waitcnt vmcnt({younger}) lgkmcnt(0)")
                w = WF[i & 1]
                A(mfma32(0, w, OF[b] + 4*i, 0)); A(mfma32(16, w + 4, OF[b] + 4*i, 16))
        A(f"s_lshr_b32 s7, s{S_WAVE}, 2"); A("s_add_u32 s5, s7, 18")
        self.lds_spin_ge(L_LAND, 1, 1, "s5", 2)
        self.lds_spin_ge(L_CNT, 1, 1, "s7", 2)
        if self.o.get("gate_o", 1): self.lds_spin_ge(L_CNT + 12, 1, 1, 4, 2)
        poll(); issue(0)
        for r in (14, 15, 16): A(f"v_mov_b32 v{r}, 0")
        self.stampit(252)
        A(f"s_mov_b32 s{S_CNT}, 4")
        A.raw(".p2align 6")
        A.label("L_p3loop")
        for b in range(2):
            lb = A.newlabel("L_pb"); lj = A.newlabel("L_pj")
            if b == 1:
                A(f"s_sub_u32 s{S_CNT}, s{S_CNT}, 1"); A(f"s_cmp_eq_u32 s{S_CNT}, 0"); A("s_cbranch_scc1 L_p3last")
            A(f"s_andn2_b32 s3, s{S_RDY}, s{S_ISS}"); A(f"s_cbranch_scc0 {lb}")
            issue(1 - b); process(b, 4)
            A(f"s_branch {lj}" if b == 0 else "s_branch L_p3loop")
            A.label(lb)
            process(b, 0); poll(); issue(1 - b)
            if b == 0: A.label(lj)
            else: A("s_branch L_p3loop")
        A.label("L_p3last")
        process(1, 0)
        self.stampit(252)
        A(f"s_lshl_b32 s3, s{S_WAVE}, 12"); A(f"s_add_u32 s3, s3, {L_R2}"); A(f"v_add_u32 v190, s3, v{VL16}")
        A("s_xor_b32 s3, s3, 16384"); A(f"v_add_u32 v191, s3, v{VL16}")
        A("s_barrier")
        A("s_nop 7")
        for r in range(4): A(f"ds_write_b128 v190, {vr(16+4*r,4)} offset:{1024*r}")
        A("s_waitcnt lgkmcnt(0)")
        A("s_barrier")
        for r in range(4): A(f"ds_read_b128 {vr(16+4*r,4)}, v191 offset:{1024*r}")
        for h in range(2):
            A(f"s_waitcnt lgkmcnt({2-2*h})")
            for r in range(8*h, 8*h+8): A(f"v_add_f32 v{r}, v{r}, v{16+r}")
            for r in range(8*h, 8*h+8): A(f"v_fma_f32 v{r}, v{GR}, v{r}, v{T2+r}")
            for i in range(4*h, 4*h+4): A(f"v_cvt_pk_bf16_f32 v{48+i}, v{2*i}, v{2*i+1}")
            A("s_nop 1")
            A(f"v_permlane32_swap_b32 v{48+4*h}, v{48+4*h+2}")
            A(f"v_permlane32_swap_b32 v{48+4*h+1}, v{48+4*h+3}")
            A("s_nop 1")
            A(f"buffer_store_dwordx4 {vr(48+4*h,4)}, v{VOUT}, s[{SB}:{SB+3}], 0 offen offset:{32*h}")
        self.stampit(252)
        self.stamp_flush(252, 190, VLANE)
        A("s_endpgm")

    def build(self):
        A = self.A
        self.prologue()
        self.p1_compute()
        self.p2_compute()
        A("s_branch L_p3")
        self.fallback()
        self.helper_p1()
        self.helper_p2()
        self.p3()
        A.label("L_end")
        A("s_endpgm")
        return HEADER.format(grid=256, block=512, lds=LDS_BYTES, name=KN) + A.text() + FOOTER.format(name=KN, nvgpr=256, accum=256)


if __name__ == "__main__":
    import argparse, json
    ap = argparse.ArgumentParser()
    ap.add_argument("out"); ap.add_argument("--rot", type=int, default=0); ap.add_argument("--stamp", action="store_true")
    ap.add_argument("--nomoe", action="store_true"); ap.add_argument("--opts", default="{}")
    a = ap.parse_args()
    g = Gen(rot=a.rot, stamp=a.stamp, moe=not a.nomoe, opts=json.loads(a.opts))
    open(a.out, "w").write(g.build())
```

```python
import sys, math, struct
from asmlib import *

KN = "gated_mix__softmax_full_mha__moe_arch_mod__prompt_kernel"
def f32bits(x): return struct.unpack("<I", struct.pack("<f", x))[0]
QSCALE = math.log2(math.e) / math.sqrt(32.0)
LOG2E = math.log2(math.e)

WS_KV = 0
WS_O  = 8 << 20
WS_G  = 12 << 20
WS_GU = WS_G + 0x4000
WS_YP = WS_G + 0x40000
WS_F1 = WS_G + 0x60000
WS_F3 = WS_F1 + 0x800
WS_KEYS = WS_F1 + 0x1000
WS_FA = WS_F1 + 0x2000
WS_KVA = 20 << 20
WS_ST = 16 << 20
DBG_C0, DBG_KEY, DBG_C1 = 0, 128, 132

G_STAGE = 40960; G_NSLOT = 3
L_WR = 3 * 40960
KV_SLOT = 32768; KV_NSLOT = 4
L_R2 = 131072
L_R1 = L_R2 + 24576
L_CNT = L_R1
L_LAND = L_R1 + 32
L_PROG = L_R1 + 256
L_PART = L_R1 + 2560
L_H = L_R1 + 4608
L_TAG = L_R1 + 6144
LDS_BYTES = 163840

SPIN_MAX = 1 << 16
OPS_AT = 10

P_X, P_W, P_WO, P_BX, P_WR, P_WG, P_WU, P_WD, P_GW, P_OUT, P_DBG, P_WS = [16 + 2 * i for i in range(12)]
SX, SW, SWS, SDBG, SA, SB = 40, 44, 48, 52, 56, 60
S_WAVE, S_RB, S_HP, S_U, S_T0 = 64, 65, 66, 67, 68
S_SEL, S_KEY = 70, 71
S_XCC = 73
S_TAG = 15
S_STI = 72
S_TMP = 74


class Gen:
    def __init__(self, rot=0, stamp=False, moe=True, stop_after=3, opts=None):
        self.A = Asm()
        self.rot = rot; self.stamp = stamp; self.moe = moe; self.stop_after = stop_after
        self.o = opts or {}

    def stampit(self, vreg):
        if not self.stamp: return
        A = self.A
        if self.o.get("rt", 0):
            A("s_memrealtime s[98:99]"); A("s_waitcnt lgkmcnt(0)"); A("s_sub_u32 s98, s98, s100"); A("s_add_u32 s98, s98, 1")
        else:
            A("s_memtime s[98:99]")
            A("s_waitcnt lgkmcnt(0)")
            A(f"s_sub_u32 s98, s98, s{S_T0}")
        A(f"s_mov_b32 m0, s{S_STI}")
        A("s_nop 1")
        A(f"v_writelane_b32 v{vreg}, s98, m0")
        A(f"s_add_u32 s{S_STI}, s{S_STI}, 1")

    def stamp_flush(self, vreg, vtmp, vlane):
        if not self.stamp: return
        A = self.A
        A("s_memrealtime s[98:99]"); A("s_waitcnt lgkmcnt(0)")
        A(f"v_writelane_b32 v{vreg}, s100, 62"); A(f"v_writelane_b32 v{vreg}, s98, 63")
        A(f"s_lshl_b32 s98, s2, 12")
        A(f"s_lshl_b32 s99, s{S_WAVE}, 8")
        A(f"s_add_u32 s98, s98, s99")
        A(f"s_add_u32 s98, s98, {WS_ST}")
        A(f"v_lshlrev_b32 v{vtmp}, 2, v{vlane}")
        A(f"buffer_store_dword v{vreg}, v{vtmp}, s[{SWS}:{SWS+3}], s98 offen")
        if self.o.get("dbgwg") is not None:
            lab = A.newlabel("L_dbg")
            A(f"s_lshl_b32 s98, s2, 4"); A(f"s_add_u32 s98, s98, s{S_WAVE}"); A(f"s_cmp_lg_u32 s98, {self.o['dbgwg']*16}"); A(f"s_cbranch_scc1 {lab}")
            A("s_mov_b64 exec, 0x7fff")
            A(f"buffer_store_dword v{vreg}, v{vtmp}, s[{SDBG}:{SDBG+3}], 0 offen offset:4")
            A.label(lab)

    def poll(self, srd_, voff, soff, nlanes_mask, want, vtmp, cmp="eq"):
        A = self.A
        lab = A.newlabel("L_poll"); done = A.newlabel("L_polld")
        A(f"s_mov_b32 s96, {SPIN_MAX}")
        A(f"s_mov_b64 exec, {hex(nlanes_mask)}")
        A.label(lab)
        A(f"buffer_load_dword v{vtmp}, v{voff}, s[{srd_}:{srd_+3}], {soff} offen sc1")
        A("s_waitcnt vmcnt(0)")
        A(f"v_cmp_ne_u32 vcc, {want}, v{vtmp}")
        A("s_sub_u32 s96, s96, 1")
        A("s_cmp_eq_u32 s96, 0")
        A(f"s_cbranch_scc1 {done}")
        A("s_nop 2")
        A(f"s_cbranch_vccz {done}")
        A("s_sleep 1")
        A(f"s_branch {lab}")
        A.label(done)
        A("s_mov_b64 exec, -1")

    def prologue(self):
        A = self.A
        A("s_cmp_ge_u32 s2, 256")
        A("s_cbranch_scc1 L_end")
        A("s_load_dwordx16 s[16:31], s[0:1], 0")
        A("s_load_dwordx8 s[32:39], s[0:1], 64")
        if self.stamp:
            A(f"s_memtime s[{S_T0}:{S_T0+1}]")
            A(f"s_mov_b32 s{S_STI}, 0")
            A("s_memrealtime s[100:101]")
        A("v_lshrrev_b32 v1, 6, v0")
        A("v_and_b32 v0, 63, v0")
        A(f"v_readfirstlane_b32 s{S_WAVE}, v1")
        A("s_and_b32 s3, s2, 7")
        A("s_lshr_b32 s4, s2, 3")
        A("s_and_b32 s5, s3, 1")
        A("s_lshl_b32 s5, s5, 3")
        A("s_and_b32 s6, s4, 7")
        A(f"s_add_u32 s{S_RB}, s5, s6")
        A("s_lshr_b32 s5, s3, 1")
        A("s_lshl_b32 s5, s5, 2")
        A("s_lshr_b32 s6, s4, 3")
        A(f"s_add_u32 s{S_HP}, s5, s6")
        A("s_waitcnt lgkmcnt(0)")
        srd(A, SX, P_X, 2048 * 1024 * 2)
        srd(A, SW, P_W, 1024 * 3072 * 2)
        srd(A, SWS, P_WS, 32 << 20)
        srd(A, SDBG, P_DBG, 256)
        A(f"s_cmp_lt_u32 s{S_WAVE}, 4")
        A("s_cbranch_scc1 L_groupa")
        A(f"s_cmp_lt_u32 s{S_WAVE}, 8")
        A("s_cbranch_scc1 L_groupb")

    def p1_compute(self):
        A = self.A
        FA, FB, VX, VW = 96, 116, 136, 140
        VL16 = 165
        VLANE = 166
        self.VL16, self.VLANE = VL16, VLANE
        A(f"v_mov_b32 v{VLANE}, v0")
        A(f"v_lshlrev_b32 v{VL16}, 4, v0")
        if self.stamp: A("v_mov_b32 v167, 0")
        A(f"s_and_b32 s{S_U}, s{S_WAVE}, 1")
        lab = A.newlabel("L_tag")
        A(f"s_lshl_b32 s3, s2, 4"); A(f"s_add_u32 s3, s3, s{S_WAVE}"); A("s_cmp_lg_u32 s3, 1"); A(f"s_cbranch_scc1 {lab}")
        A("s_memrealtime s[4:5]"); A("s_waitcnt lgkmcnt(0)")
        A("s_and_b32 s4, s4, 0x7ffffff0"); A("s_or_b32 s4, s4, 0x80000000")
        A("v_mov_b32 v141, 0"); A("v_mov_b32 v142, s4")
        A("s_mov_b64 exec, 1")
        A(f"buffer_store_dword v142, v141, s[{SDBG}:{SDBG+3}], 0 offen sc1")
        A("s_mov_b64 exec, -1")
        A.label(lab)
        A("v_and_b32 v141, 31, v0")
        A("v_lshrrev_b32 v142, 5, v0")
        A("v_bfe_u32 v143, v0, 1, 3")
        A("v_xor_b32 v143, v143, v142")
        A("v_lshlrev_b32 v143, 4, v143")
        A("v_lshlrev_b32 v141, 7, v141")
        A(f"s_lshr_b32 s3, s{S_WAVE}, 1")
        A("s_lshl_b32 s3, s3, 13")
        A("v_add_u32 v141, s3, v141")
        for j in range(4):
            A(f"v_xor_b32 v{VX+j}, {32*j}, v143")
            A(f"v_add_u32 v{VX+j}, v{VX+j}, v141")
        A("v_bfe_u32 v143, v0, 2, 2")
        A("v_lshl_add_u32 v143, v142, 3, v143")
        A("v_lshlrev_b32 v143, 7, v143")
        A("v_and_b32 v141, 3, v0")
        A("v_lshl_add_u32 v143, v141, 3, v143")
        A("v_bfe_u32 v141, v0, 4, 1")
        A("v_lshl_add_u32 v143, v141, 5, v143")
        A("v_bfe_u32 v141, v0, 3, 1")
        A(f"v_xor_b32 v141, s{S_U}, v141")
        A(f"v_lshl_add_u32 v{VW}, v141, 6, v143")
        for i in range(96): A(f"v_mov_b32 v{i}, 0")

        def reads(F, j):
            r = [f"ds_read_b128 {vr(F,4)}, v{VX+j}"]
            for seg in range(3):
                for r2 in range(2):
                    r.append(f"ds_read_b64_tr_b16 {vr(F+8+4*seg+2*r2,2)}, v{VW} offset:{16384+seg*8192+j*2048+r2*512}")
            r.append(f"ds_read_b128 {vr(F+4,4)}, v{VX+j} offset:4096")
            return r
        def mf(F):
            x0, x1, wq, wk, wv = F, F+4, F+8, F+12, F+16
            return [mfma32(0,wq,x0,0), mfma32(16,wk,x0,16), mfma32(32,x0,wv,32),
                    mfma32(48,wq,x1,48), mfma32(64,wk,x1,64), mfma32(80,x1,wv,80)]
        S_CNT, S_SLOT, S_D = S_TMP, S_TMP+1, S_TMP+2
        A(f"s_mov_b32 s{S_CNT}, 16")
        A(f"s_mov_b32 s{S_SLOT}, 0")
        A(f"s_mov_b32 s{S_D+1}, {-(G_NSLOT-1)*G_STAGE & 0xffffffff}")
        A(f"s_mov_b32 s{S_D+2}, {G_STAGE}")
        self.stampit(167)
        A("s_barrier")
        self.stampit(167)
        for r in reads(FA, 0): A(r)
        A.raw(".p2align 6")
        A.label("L_g1loop")
        def step(Fc, Fn, jn, kind, extra=None):
            m = mf(Fc); r = reads(Fn, jn)
            extra = extra or {}
            if kind in ("norm", "after"):
                pat = [2,2,1,1,1,1]; k = 0
                for i in range(6):
                    if kind == "norm" and i < 4: A("s_waitcnt lgkmcnt(5)")
                    A(m[i])
                    for _ in range(pat[i]): A(r[k]); k += 1
                    for x in extra.get(i, []): A(x)
            else:
                A("s_waitcnt lgkmcnt(5)"); A(m[0]); A(r[0]); A(r[1]); A(r[2])
                A("s_waitcnt lgkmcnt(6)"); A(m[1]); A(r[3]); A(r[4]); A(r[5])
                A("s_waitcnt lgkmcnt(7)"); A(m[2]); A(r[6]); A(r[7])
                A("s_waitcnt lgkmcnt(8)"); A(m[3])
                A(f"v_add_u32 v{VX+2}, s{S_D}, v{VX+2}"); A(f"v_add_u32 v{VX+3}, s{S_D}, v{VX+3}"); A(f"v_add_u32 v{VW}, s{S_D}, v{VW}")
                A(m[4])
                A(f"s_sub_u32 s{S_CNT}, s{S_CNT}, 1")
                A(m[5])
                A("s_waitcnt lgkmcnt(0)")
                if self.o.get("st1", 0): self.stampit(167)
                A("s_barrier")
                if self.o.get("st1", 0): self.stampit(167)
        slotadv = [f"s_add_u32 s{S_SLOT}, s{S_SLOT}, 1", f"s_cmp_eq_u32 s{S_SLOT}, {G_NSLOT}",
                   f"s_cselect_b32 s{S_D}, s{S_D+1}, s{S_D+2}", f"s_cselect_b32 s{S_SLOT}, 0, s{S_SLOT}"]
        step(FA, FB, 1, "norm", {3: slotadv[:2], 4: slotadv[2:], 5: [f"v_add_u32 v{VX}, s{S_D}, v{VX}"]})
        step(FB, FA, 2, "norm", {4: [f"v_add_u32 v{VX+1}, s{S_D}, v{VX+1}"]})
        step(FA, FB, 3, "bar")
        step(FB, FA, 0, "after", {4: [f"s_cmp_lg_u32 s{S_CNT}, 0"]})
        A("s_cbranch_scc1 L_g1loop")
        A("s_waitcnt lgkmcnt(0)")
        self.stampit(167)
        A(f"s_lshl_b32 s3, s{S_U}, 14")
        A(f"s_lshr_b32 s4, s{S_WAVE}, 1")
        A("s_lshl_b32 s4, s4, 13")
        A("s_add_u32 s3, s3, s4")
        A(f"v_add_u32 v141, s3, v{VL16}")
        A(f"s_lshl_b32 s5, s{S_HP}, 19"); A(f"s_lshl_b32 s6, s{S_RB}, 15"); A("s_add_u32 s5, s5, s6"); A("s_add_u32 s5, s5, s3")
        A(f"s_add_u32 s5, s5, {WS_KVA}"); A("s_add_u32 s6, s5, 4096")
        A(f"s_mov_b32 s3, {f32bits(QSCALE)}")
        A("s_nop 7")
        for t in range(2):
            b = 48 * t
            for blk in (1, 2):
                for i in range(8):
                    A(f"v_cvt_pk_bf16_f32 v{96+16*t+8*(blk-1)+i}, v{b+16*blk+2*i}, v{b+16*blk+2*i+1}")
            for f in range(4):
                if not self.o.get("noA", 0): A(f"buffer_store_dwordx4 {vr(96+16*t+4*f,4)}, v{VL16}, s[{SWS}:{SWS+3}], s{5+t} offen offset:{1024*f}")
            for f in range(4):
                A(f"ds_write_b128 v141, {vr(96+16*t+4*f,4)} offset:{4096*t+1024*f}")
        for t in (1, 0):
            b = 48 * t
            for i in range(16): A(f"v_mul_f32 v{b+i}, s3, v{b+i}")
            for i in range(8): A(f"v_cvt_pk_bf16_f32 v{(128, 144)[t]+i}, v{b+2*i}, v{b+2*i+1}")
            if t == 1:
                A(f"s_lshl_b32 s4, s{S_WAVE}, 11"); A(f"s_add_u32 s4, s4, {L_R2}"); A(f"v_add_u32 v142, s4, v{VL16}")
                A("ds_write_b128 v142, v[144:147]"); A("ds_write_b128 v142, v[148:151] offset:1024")
        self.att_consts()
        A("s_waitcnt lgkmcnt(0)")
        A("s_barrier")

    def groupb_p1(self):
        A = self.A
        VL16, VLANE = 165, 166
        A.label("L_groupb")
        A(f"v_mov_b32 v{VLANE}, v0")
        A(f"v_lshlrev_b32 v{VL16}, 4, v0")
        if self.stamp: A("v_mov_b32 v167, 0")
        A(f"s_and_b32 s{S_U}, s{S_WAVE}, 1")
        if self.o.get("codepf", 1):
            lab = A.newlabel("L_cpf")
            A(f"s_cmp_lg_u32 s{S_WAVE}, 4"); A(f"s_cbranch_scc1 {lab}")
            A("s_getpc_b64 s[6:7]")
            A.label("L_cpf_pc")
            A("s_sub_u32 s6, s6, L_cpf_pc-L_code0"); A("s_subb_u32 s7, s7, 0")
            A("s_lshr_b32 s4, s2, 3")
            A("v_lshl_add_u32 v1, v0, 5, s4"); A("v_lshlrev_b32 v1, 7, v1")
            A("v_cmp_gt_u32 vcc, L_code1-L_code0, v1")
            A("s_and_saveexec_b64 s[8:9], vcc")
            A("global_load_dword v2, v1, s[6:7]")
            A("s_mov_b64 exec, -1")
            A.label(lab)
        self.att_consts()
        A(f"s_and_b32 s4, s{S_WAVE}, 3"); A("s_lshl_b32 s4, s4, 11"); A(f"s_add_u32 s4, s4, {L_R2}"); A(f"v_add_u32 v142, s4, v{VL16}")
        self.stampit(167); self.stampit(167); self.stampit(167)
        for i in range(18): A("s_barrier")
        A("ds_read_b128 v[128:131], v142"); A("ds_read_b128 v[132:135], v142 offset:1024")

    R = dict(S=[0, 16], O=32, NM=48, P=[64, 72], K=80, V=[88, 96, 104, 112], L=120, ONES=124, Q=128,
             IDX=136, VA=137, VBASE=138, VT=139, VLA=152, VPA=153, VST=154, T=156)

    def att_consts(self):
        A = self.A; R = self.R; VL16, VLANE = 165, 166
        ONES, IDX, T = R["ONES"], R["IDX"], R["T"]
        A(f"s_lshl_b32 s4, s{S_U}, 14")
        A(f"v_add_u32 v{R['VBASE']}, s4, v{VL16}")
        A(f"v_mov_b32 v{R['VA']}, v{R['VBASE']}")
        A(f"v_mov_b32 v{R['VLA']}, {L_LAND}")
        A(f"s_lshl_b32 s4, s{S_WAVE}, 8"); A(f"s_add_u32 s4, s4, {L_PROG}")
        A(f"v_lshl_add_u32 v{R['VPA']}, v{VLANE}, 2, s4")
        A(f"v_and_b32 v{T}, 1, v{VLANE}")
        A(f"v_mov_b32 v{T+1}, 0x44444444"); A(f"v_mov_b32 v{T+2}, 0xeeeeeeee")
        A(f"v_cmp_eq_u32 vcc, 0, v{T}"); A("s_nop 1")
        A(f"v_cndmask_b32 v{IDX}, v{T+2}, v{T+1}, vcc")
        A(f"v_and_b32 v{T}, 2, v{VLANE}"); A(f"v_bfe_u32 v{T+1}, v{VLANE}, 2, 1"); A(f"v_mov_b32 v{T+2}, 0x3f803f80")
        A(f"v_cmp_eq_u32 vcc, 0, v{T}"); A("s_nop 1")
        A(f"v_cndmask_b32 v{T+4}, 0, v{T+2}, vcc")
        A(f"v_cmp_eq_u32 vcc, 0, v{T+1}"); A("s_nop 1")
        A(f"v_cndmask_b32 v{T+5}, 0, v{T+4}, vcc")

    def p2_compute(self, grp):
        A = self.A; R = self.R; VL16, VLANE = 165, 166
        S, O, NM, P, K, V, L, ONES, Q = [R[k] for k in "S O NM P K V L ONES Q".split()]
        IDX, VA, VBASE, VT, VLA, VPA, VST, T = [R[k] for k in "IDX VA VBASE VT VLA VPA VST T".split()]
        G = "AB"[grp]
        def rdK(kt, f): return f"ds_read_b128 {vr(K+4*f,4)}, v{VA} offset:{kt*4096+f*1024}"
        def rdV(t, kt, f): return f"ds_read_b128 {vr(V[t&3]+4*f,4)}, v{VA} offset:{kt*4096+2048+f*1024}"
        A(rdK(0,0)); A(rdK(0,1))
        self.read_tag(T)
        self.stampit(167)
        A(rdV(0,0,0)); A(rdV(0,0,1)); A(rdV(1,1,0)); A(rdV(1,1,1))
        A(mfma32(S[0], K, Q, None)); A(mfma32(S[0], K+4, Q+4, S[0]))
        A(f"v_mov_b32 v{ONES}, v{T+5}"); A(f"v_mov_b32 v{ONES+1}, v{T+5}")
        A(f"v_sub_u32 v{ONES+2}, v{T+4}, v{T+5}"); A(f"v_sub_u32 v{ONES+3}, v{T+4}, v{T+5}")
        for i in range(16): A(f"v_mov_b32 v{O+i}, 0")
        for i in range(4): A(f"v_mov_b32 v{L+i}, 0")
        A("v_mov_b32 v149, 0")
        S_SL, S_NEED = S_TMP+1, S_TMP+5
        A(f"s_mov_b32 s{S_SL}, 0"); A(f"s_mov_b32 s{S_TMP+20}, 0"); A(f"s_mov_b32 s{S_NEED}, 0")
        self.rowmax_to_nm()
        A("s_nop 1")
        A(mfma32(S[0], K, Q, NM)); A(mfma32(S[0], K+4, Q+4, S[0]))
        A(rdK(1,0)); A(rdK(1,1))
        if grp == 0:
            A(f"s_lshl_b32 s3, s{S_HP}, 4"); A(f"s_add_u32 s3, s3, s{S_RB}"); A("s_lshl_b32 s3, s3, 5"); A(f"s_add_u32 s3, s3, s{S_WAVE}")
            A("s_lshl_b32 s3, s3, 2"); A(f"s_add_u32 s3, s3, {WS_FA}")
            A(f"v_mov_b32 v{T}, 0"); A(f"v_mov_b32 v{T+1}, s{S_XCC}")
            A("s_waitcnt vmcnt(0)")
            A("s_mov_b64 exec, 1")
            A(f"buffer_store_dword v{T+1}, v{T}, s[{SWS}:{SWS+3}], s3 offen")
            A("s_mov_b64 exec, -1")
        else: A("s_nop 7")
        hi, lo = self.o.get("prioA", [2, 0]) if grp == 0 else self.o.get("prioB", [1, 1])
        A(f"s_setprio {hi}")
        A("s_waitcnt lgkmcnt(0)")
        A("s_nop 2")

        def unit(t, kt, do_qk=True, do_pv=True, last=False):
            s = S[t & 1]; p = P[t & 1]; sn = S[(t + 1) & 1]; pp = P[(t - 1) & 1]; vb = V[(t - 1) & 3]
            e = lambda i: f"v_exp_f32 v{s+i}, v{s+i}"
            c = lambda i: f"v_cvt_pk_bf16_f32 v{p+i}, v{s+2*i}, v{s+2*i+1}"
            M = [mfma32(sn, K, Q, NM), mfma32(sn, K+4, Q+4, sn), mfma32(O, vb, pp, O), mfma32(O, vb+4, pp+4, O),
                 f"v_smfmac_f32_16x16x64_bf16 {vr(L,4)}, {vr(ONES,4)}, {vr(pp,8)}, v{IDX}"]
            rd = [None, rdK(kt,0), rdK(kt,1), rdV(t+2,kt,0), rdV(t+2,kt,1)] if kt is not None else [None]*5
            g = [[e(0), e(1), e(2)], [c(0), e(3), e(4), e(5)], [c(1), e(6), e(7), c(2), e(8)],
                 [c(3), e(9), e(10), e(11), c(4)], [e(12), e(13), c(5), e(14), e(15), c(6), c(7)]]
            for i in range(5):
                if (do_qk if i < 2 else do_pv): A(M[i])
                if i == 0 and last:
                    if lo != hi: A(f"s_setprio {lo}")
                    A(f"ds_read_b32 v{VT}, v{VLA}")
                if rd[i]: A(rd[i])
                if i == 4 and last:
                    A(f"s_add_u32 s{S_SL}, s{S_SL}, {KV_SLOT}"); A(f"s_and_b32 s{S_SL}, s{S_SL}, {KV_NSLOT*KV_SLOT-1}")
                    A(f"s_add_u32 s{S_NEED}, s{S_NEED}, 1")
                for x in g[i]: A(x)
            if kt is not None and not last: A("s_waitcnt lgkmcnt(2)")
        def handshake(tag):
            A(f"v_add_u32 v{VA}, s{S_SL}, v{VBASE}")
            A(f"v_mov_b32 v{VST}, s{S_NEED}")
            A("s_waitcnt lgkmcnt(0)")
            if self.o.get("st2", 0): self.stampit(167)
            A(f"v_readfirstlane_b32 s3, v{VT}")
            A(f"ds_write_b32 v{VPA}, v{VST}")
            A(f"s_cmp_ge_u32 s3, s{S_NEED}")
            A(f"s_cbranch_scc0 L_hs_slow{G}{tag}")
            A.label(f"L_hs_back{G}{tag}")
            if lo != hi: A(f"s_setprio {hi}")
            if self.o.get("st2", 0): self.stampit(167)
        unit(0, 2, do_pv=False); unit(1, 3); unit(2, None, last=True)
        handshake(0)
        A(rdK(0,0)); A(rdK(0,1)); A(rdV(4,0,0)); A(rdV(4,0,1)); A("s_waitcnt lgkmcnt(2)")
        unit(3, 1); unit(4, 2); unit(5, 3, last=True)
        handshake(1)
        A.raw(".p2align 6")
        A.label(f"L_attloop{G}")
        unit(6, 0); unit(7, 1); unit(8, 2); unit(9, 3, last=True)
        handshake(2)
        A(f"s_cmp_eq_u32 s{S_NEED}, {OPS_AT}")
        A(f"s_cbranch_scc1 L_ops{G}")
        A(f"s_cmp_lt_u32 s{S_NEED}, 16")
        A(f"s_cbranch_scc1 L_attloop{G}")
        unit(62, None); unit(63, None, do_qk=False)
        A("s_nop 1")
        A(mfma32(O, V[3], P[1], O)); A(mfma32(O, V[3]+4, P[1]+4, O))
        A(f"v_smfmac_f32_16x16x64_bf16 {vr(L,4)}, {vr(ONES,4)}, {vr(P[1],8)}, v{IDX}")
        if grp == 0: A("s_branch L_att_tail")

    def att_tail(self):
        A = self.A; R = self.R; VL16, VLANE = 165, 166
        O, P, L, T = R["O"], R["P"], R["L"], R["T"]
        A.label("L_att_tail")
        A("s_setprio 0")
        self.stampit(167)
        A(f"s_lshl_b32 s3, s{S_RB}, 2"); A(f"s_and_b32 s4, s{S_WAVE}, 2"); A("s_add_u32 s3, s3, s4")
        A(f"s_lshr_b32 s4, s{S_WAVE}, 2"); A("s_add_u32 s3, s3, s4"); A("s_lshl_b32 s3, s3, 16")
        A(f"s_lshl_b32 s4, s{S_HP}, 1"); A(f"s_add_u32 s4, s4, s{S_U}"); A("s_lshl_b32 s4, s4, 11")
        A("s_add_u32 s3, s3, s4"); A(f"s_add_u32 s{S_TMP+14}, s3, {WS_O}")
        A("s_nop 7")
        A.label("L_att_fin")
        A(f"v_add_f32 v{L}, v{L}, v{L+1}")
        A(f"v_mov_b32 v{T}, 0x53800000")
        A(f"v_cmp_nlt_f32 vcc, v{L}, v{T}")
        A(f"v_rcp_f32 v{L+2}, v{L}")
        A("s_nop 3")
        A("s_cbranch_vccnz L_fallback")
        A.label("L_att_ok")
        for h in range(2):
            for i in range(8*h, 8*h+8): A(f"v_mul_f32 v{O+i}, v{L+2}, v{O+i}")
            for i in range(4*h, 4*h+4): A(f"v_cvt_pk_bf16_f32 v{P[0]+i}, v{O+2*i}, v{O+2*i+1}")
            A(f"buffer_store_dwordx4 {vr(P[0]+4*h,4)}, v{VL16}, s[{SWS}:{SWS+3}], s{S_TMP+14} offen offset:{1024*h} sc1")
        self.p3_setup()
        self.p3_pre(2)
        A("s_waitcnt vmcnt(0)")
        self.stampit(167)
        def c():
            A(f"s_lshl_b32 s3, s{S_RB}, 4"); A(f"s_add_u32 s3, s3, s{S_HP}"); A("s_lshl_b32 s3, s3, 2"); A(f"s_add_u32 s3, s3, {WS_F3}")
        self.last_arriver(6, lambda: self.set_flag(c), 8)

    def read_tag(self, v, wait=False):
        A = self.A
        A(f"v_mov_b32 v{v}, {L_TAG}"); A(f"ds_read_b32 v{v}, v{v}")
        A(f"s_getreg_b32 s{S_XCC}, hwreg(HW_REG_XCC_ID, 0, 4)")
        A("s_waitcnt lgkmcnt(0)")
        A(f"v_readfirstlane_b32 s{S_TAG}, v{v}")
        A("s_nop 1")
        A(f"s_or_b32 s{S_XCC}, s{S_XCC}, s{S_TAG}")

    def rowmax_to_nm(self):
        A = self.A; R = self.R
        s, NM, t = R["S"][0], R["NM"], R["T"]
        A(f"v_max3_f32 v{t}, v{s}, v{s+1}, v{s+2}")
        for i in range(3, 15, 2): A(f"v_max3_f32 v{t}, v{t}, v{s+i}, v{s+i+1}")
        A(f"v_max_f32 v{t}, v{t}, v{s+15}")
        A(f"v_mov_b32 v{t+1}, v{t}")
        A("s_nop 1")
        A(f"v_permlane32_swap_b32 v{t}, v{t+1}")
        A("s_nop 1")
        A(f"v_max_f32 v{t}, v{t}, v{t+1}")
        for i in range(16): A(f"v_sub_f32 v{NM+i}, 0, v{t}")

    def fallback(self):
        A = self.A; R = self.R; VL16, VLANE = 165, 166
        S, O, NM, P, K, V, L, ONES, Q, IDX, T = [R[k] for k in "S O NM P K V L ONES Q IDX T".split()]
        S_NEED = S_TMP + 5
        for G in "AB":
            A.label(f"L_ops{G}")
            self.p3_operands()
            A(f"s_branch L_attloop{G}")
            for tag in range(3):
                A.label(f"L_hs_slow{G}{tag}")
                if self.stamp: A("s_memtime s[10:11]")
                A(f"s_mov_b32 s96, {SPIN_MAX*16}")
                A.label(f"L_hs_spin{G}{tag}")
                A("s_sleep 1")
                A(f"ds_read_b32 v{R['VT']}, v{R['VLA']}")
                A("s_waitcnt lgkmcnt(0)")
                A(f"v_readfirstlane_b32 s3, v{R['VT']}")
                A("s_sub_u32 s96, s96, 1"); A("s_cmp_eq_u32 s96, 0"); A(f"s_cbranch_scc1 L_hs_out{G}{tag}")
                A(f"s_cmp_ge_u32 s3, s{S_NEED}")
                A(f"s_cbranch_scc0 L_hs_spin{G}{tag}")
                A.label(f"L_hs_out{G}{tag}")
                if self.stamp:
                    A("s_memtime s[12:13]"); A("s_waitcnt lgkmcnt(0)"); A("s_sub_u32 s12, s12, s10")
                    A(f"s_add_u32 s13, s{S_NEED}, 40"); A("s_mov_b32 m0, s13"); A("s_nop 1"); A("v_writelane_b32 v167, s12, m0")
                A(f"s_branch L_hs_back{G}{tag}")
        A.label("L_fallback")
        A(f"s_cmp_eq_u32 s{S_TMP+20}, 1")
        A("s_cbranch_scc1 L_att_ok")
        A(f"s_mov_b32 s{S_TMP+20}, 1")
        S_B, S_I, S_O = S_TMP+2, S_TMP+3, S_TMP+4
        A(f"s_lshl_b32 s5, s{S_HP}, 6"); A(f"s_add_u32 s5, s5, {WS_F1}")
        A(f"v_lshlrev_b32 v{T}, 2, v{VLANE}")
        self.poll_val(SWS, T, "s5", 0xffff, f"s{S_TAG}", T + 1)
        A(f"s_lshl_b32 s{S_B}, s{S_HP}, 19"); A(f"s_lshl_b32 s3, s{S_U}, 14"); A(f"s_add_u32 s{S_B}, s{S_B}, s3")
        def toff():
            A(f"s_lshr_b32 s3, s{S_I}, 2"); A("s_lshl_b32 s3, s3, 15"); A(f"s_and_b32 s4, s{S_I}, 3"); A("s_lshl_b32 s4, s4, 12")
            A("s_add_u32 s3, s3, s4"); A(f"s_add_u32 s{S_O}, s3, s{S_B}")
        MX = T + 3; s = S[0]; p = P[0]
        A(f"v_mov_b32 v{MX}, 0xff800000")
        A(f"s_mov_b32 s{S_I}, 0")
        A.label("L_fb1")
        toff()
        A(f"buffer_load_dwordx4 {vr(K,4)}, v{VL16}, s[{SWS}:{SWS+3}], s{S_O} offen sc1")
        A(f"buffer_load_dwordx4 {vr(K+4,4)}, v{VL16}, s[{SWS}:{SWS+3}], s{S_O} offen offset:1024 sc1")
        A("s_waitcnt vmcnt(0)")
        A(mfma32(s, K, Q, None)); A(mfma32(s, K+4, Q+4, s))
        A("s_nop 7"); A("s_nop 7")
        for i in range(0, 16, 2): A(f"v_max3_f32 v{MX}, v{MX}, v{s+i}, v{s+i+1}")
        A(f"s_add_u32 s{S_I}, s{S_I}, 1"); A(f"s_cmp_lt_u32 s{S_I}, 64"); A("s_cbranch_scc1 L_fb1")
        for i in range(16): A(f"v_mov_b32 v{s+i}, v{MX}")
        self.rowmax_to_nm()
        for i in range(16): A(f"v_mov_b32 v{O+i}, 0")
        for i in range(4): A(f"v_mov_b32 v{L+i}, 0")
        A(f"s_mov_b32 s{S_I}, 0")
        A.label("L_fb2")
        toff()
        for f, r in enumerate((K, K+4, V[0], V[0]+4)):
            A(f"buffer_load_dwordx4 {vr(r,4)}, v{VL16}, s[{SWS}:{SWS+3}], s{S_O} offen offset:{1024*f} sc1")
        A("s_waitcnt vmcnt(0)")
        A(mfma32(s, K, Q, NM)); A(mfma32(s, K+4, Q+4, s))
        A("s_nop 7"); A("s_nop 7")
        for i in range(16): A(f"v_exp_f32 v{s+i}, v{s+i}")
        A("s_nop 0")
        for i in range(8): A(f"v_cvt_pk_bf16_f32 v{p+i}, v{s+2*i}, v{s+2*i+1}")
        A("s_nop 1")
        A(mfma32(O, V[0], p, O)); A(mfma32(O, V[0]+4, p+4, O))
        A(f"v_smfmac_f32_16x16x64_bf16 {vr(L,4)}, {vr(ONES,4)}, {vr(p,8)}, v{IDX}")
        A(f"s_add_u32 s{S_I}, s{S_I}, 1"); A(f"s_cmp_lt_u32 s{S_I}, 64")
        A("s_nop 7"); A("s_nop 7")
        A("s_cbranch_scc1 L_fb2")
        A("s_branch L_att_fin")

    def vm_reset(self): self.vm = []
    def vm_add(self, tag, n=1): self.vm += [tag] * n
    def vm_wait(self, tag):
        idx = [i for i, t in enumerate(self.vm) if t == tag]
        if not idx: return
        n = len(self.vm) - 1 - idx[-1]
        self.A(f"s_waitcnt vmcnt({min(n,63)})")
        self.vm = self.vm[idx[-1]+1:]
    def vm_all(self):
        self.A("s_waitcnt vmcnt(0)"); self.vm = []

    def only(self, u):
        g = self
        class C:
            def __enter__(s_):
                s_.lab = g.A.newlabel("L_only")
                g.A(f"s_cmp_lg_u32 s{S_U}, {u}")
                g.A(f"s_cbranch_scc1 {s_.lab}")
            def __exit__(s_, *a): g.A.label(s_.lab)
        return C()

    def last_arriver(self, cnt_index, body, n=4):
        A = self.A
        lab = A.newlabel("L_last")
        A(f"v_mov_b32 v14, {L_CNT + 4*cnt_index}")
        A("v_mov_b32 v15, 1")
        A("s_mov_b64 exec, 1")
        A("ds_add_rtn_u32 v16, v14, v15")
        A("s_waitcnt lgkmcnt(0)")
        A("s_mov_b64 exec, -1")
        A("v_readfirstlane_b32 s3, v16")
        A("s_nop 1")
        A(f"s_cmp_lg_u32 s3, {n-1}")
        A(f"s_cbranch_scc1 {lab}")
        body()
        A.label(lab)

    def set_flag(self, soff_code):
        A = self.A
        soff_code()
        A("v_mov_b32 v14, 0")
        A(f"v_mov_b32 v15, s{S_TAG}")
        A("s_mov_b64 exec, 1")
        A(f"buffer_store_dword v15, v14, s[{SWS}:{SWS+3}], s3 offen sc1")
        A("s_mov_b64 exec, -1")

    def helper_p1(self):
        A = self.A
        AHEAD = self.o.get("ahead", 3)
        A.label("L_helper")
        A(f"s_sub_u32 s{S_U}, s{S_WAVE}, 8")
        A("s_setprio 3")
        if self.stamp: A("v_mov_b32 v167, 0")
        A("v_mov_b32 v166, v0")
        A("v_lshlrev_b32 v165, 4, v0")
        A("v_lshrrev_b32 v1, 3, v0")
        A("v_lshrrev_b32 v2, 4, v0")
        A("v_and_b32 v3, 7, v0")
        A("v_xor_b32 v4, v2, v3")
        A("v_lshlrev_b32 v4, 4, v4")
        A("v_lshl_add_u32 v10, v1, 11, v4")
        A("v_xor_b32 v11, 64, v10")
        A("v_and_b32 v2, 1, v2")
        A("v_lshlrev_b32 v2, 2, v2")
        A("v_xor_b32 v2, v2, v3")
        A("v_lshlrev_b32 v13, 4, v2")
        A("s_movk_i32 s3, 6144")
        A("v_mul_lo_u32 v5, v1, s3")
        A("v_add_u32 v12, v5, v13")
        S_XO, S_WO, S_K, S_A, S_B = S_TMP, S_TMP+1, S_TMP+2, S_TMP+3, S_TMP+4
        A(f"s_lshl_b32 s{S_XO}, s{S_RB}, 18")
        A(f"s_lshl_b32 s3, s{S_U}, 16")
        A(f"s_add_u32 s{S_XO}, s{S_XO}, s3")
        A(f"s_mul_i32 s{S_WO}, s{S_U}, {16*6144}")
        A(f"s_lshl_b32 s3, s{S_HP}, 7")
        A(f"s_add_u32 s{S_WO}, s{S_WO}, s3")
        S_CLS = S_TMP + 5
        S_TB = S_TMP + 8
        if self.rot == 4:
            tabs = []
            for c in range(4):
                seq = [c]
                for p in range(4):
                    fol = [4*p + k for k in range(4) if k != c]
                    slots = list(fol)
                    if p < 3: slots.insert(c, 4*(p+1) + c)
                    seq += slots
                assert sorted(seq) == list(range(16)), seq
                tabs.append(sum(v << (4*i) for i, v in enumerate(seq)))
            A("s_lshr_b32 s4, s2, 3"); A("s_lshr_b32 s5, s4, 3"); A("s_add_u32 s4, s4, s5"); A("s_and_b32 s4, s4, 3")
            A(f"s_mov_b32 s{S_CLS}, s4")
            A(f"s_mov_b32 s{S_TB}, {hex(tabs[0] & 0xffffffff)}"); A(f"s_mov_b32 s{S_TB+1}, {hex(tabs[0] >> 32)}")
            for c in range(1, 4):
                A(f"s_cmp_eq_u32 s4, {c}")
                A(f"s_cselect_b32 s{S_TB}, {hex(tabs[c] & 0xffffffff)}, s{S_TB}"); A(f"s_cselect_b32 s{S_TB+1}, {hex(tabs[c] >> 32)}, s{S_TB+1}")
        elif self.rot == 0:
            A(f"s_mov_b32 s{S_TB}, 0x76543210"); A(f"s_mov_b32 s{S_TB+1}, 0xfedcba98")
        def kst(dst, s_):
            A(f"s_bfe_u32 s{dst}, s{S_TB + (s_ >> 3)}, {hex((4 << 16) | (4 * (s_ & 7)))}")
        if self.rot in (0, 4): pass
        elif self.rot == 2:
            A("s_lshr_b32 s4, s2, 3")
            A("s_and_b32 s3, s4, 7"); A("s_lshl_b32 s3, s3, 1")
            A("s_lshr_b32 s4, s4, 3"); A("s_lshl_b32 s4, s4, 2")
            A("s_add_u32 s3, s3, s4"); A(f"s_and_b32 s{S_K}, s3, 15")
        if self.rot == 2:
            A(f"s_mov_b32 s6, 0x76543210"); A(f"s_mov_b32 s7, 0xfedcba98")
            A(f"s_lshl_b32 s3, s{S_K}, 2"); A(f"s_lshr_b64 s[{S_TB}:{S_TB+1}], s[6:7], s3")
            A("s_sub_u32 s3, 64, s3"); A("s_lshl_b64 s[6:7], s[6:7], s3")
            A(f"s_cmp_eq_u32 s{S_K}, 0"); A("s_cselect_b64 s[6:7], 0, s[6:7]")
            A(f"s_or_b64 s[{S_TB}:{S_TB+1}], s[{S_TB}:{S_TB+1}], s[6:7]")
        self.vm_reset()
        def issue(s):
            slot = (s % G_NSLOT) * G_STAGE
            kst(S_K, s)
            A(f"s_lshl_b32 s{S_A}, s{S_U}, 12")
            A(f"s_add_u32 s{S_A}, s{S_A}, {slot}")
            A(f"s_lshl_b32 s{S_B}, s{S_K}, 7")
            A(f"s_add_u32 s{S_B}, s{S_B}, s{S_XO}")
            for i in range(4):
                A(f"s_mov_b32 m0, s{S_A}")
                A(f"s_add_u32 s{S_A}, s{S_A}, 1024")
                A(f"buffer_load_dwordx4 v{10+(i&1)}, s[{SX}:{SX+3}], s{S_B} offen lds")
                if i < 3: A(f"s_add_u32 s{S_B}, s{S_B}, 16384")
            A(f"s_lshl_b32 s{S_A}, s{S_U}, 11")
            A(f"s_add_u32 s{S_A}, s{S_A}, {slot+16384}")
            A(f"s_mul_i32 s{S_B}, s{S_K}, {64*6144}")
            A(f"s_add_u32 s{S_B}, s{S_B}, s{S_WO}")
            for q in range(2):
                for seg in range(3):
                    A(f"s_mov_b32 m0, s{S_A}")
                    A(f"s_add_u32 s{S_A}, s{S_A}, {8192 if seg < 2 else (1024-16384) & 0xffffffff}")
                    A(f"buffer_load_dwordx4 v12, s[{SW}:{SW+3}], s{S_B} offen lds")
                    if not (q == 1 and seg == 2):
                        A(f"s_add_u32 s{S_B}, s{S_B}, {2048 if seg < 2 else 8*6144-4096}")
            self.vm_add(("g", s), 10)
        with self.only(3):
            srd(A, SA, P_WR, 2048); srd(A, SB, P_GW, 2048)
            for i, sr_ in enumerate((SA, SA, SB, SB)):
                A(f"s_mov_b32 m0, {L_WR + (i >> 1) * 2048}"); A("s_nop 0")
                A(f"buffer_load_dwordx4 v165, s[{sr_}:{sr_+3}], 0 offen offset:{(i & 1) * 1024} lds")
            A(f"s_and_b32 s3, s{S_HP}, 1"); A("s_lshl_b32 s3, s3, 6")
            A("v_xor_b32 v17, s3, v4")
            A(f"v_add_u32 v17, {L_WR}, v17")
            A(f"s_lshl_b32 s3, s{S_HP}, 10")
            A("v_add_u32 v18, s3, v165")
            A("v_mov_b32 v24, 0"); A("v_mov_b32 v25, 0")
        self.stampit(167)
        issue(0); issue(1)
        self.vm_wait(("g", 0))
        self.stampit(167)
        A("s_barrier")
        nxt = 2
        for s in range(16):
            while nxt < 16 and nxt < s + AHEAD and nxt < s + G_NSLOT:
                issue(nxt); nxt += 1
                if nxt == 16:
                    A("v_mov_b32 v27, 0")
                    A(f"buffer_load_dword v26, v27, s[{SDBG}:{SDBG+3}], 0 offen sc1")
                    self.vm_add("tag", 1)
                    A(f"s_lshl_b32 s3, s{S_HP}, 4"); A(f"s_and_b32 s4, s{S_RB}, 8"); A("s_add_u32 s3, s3, s4"); A("s_lshl_b32 s3, s3, 7"); A(f"s_add_u32 s3, s3, {WS_FA}")
                    A("v_and_b32 v9, 7, v166"); A("v_lshlrev_b32 v9, 7, v9")
                    A(f"buffer_load_dword v8, v9, s[{SWS}:{SWS+3}], s3 offen")
                    self.vm_add("touch", 1)
                    A(f"s_lshl_b32 s3, s{S_HP}, 19"); A(f"s_lshl_b32 s4, s{S_RB}, 15"); A("s_add_u32 s3, s3, s4")
                    A(f"s_lshl_b32 s4, s{S_U}, 13"); A("s_add_u32 s3, s3, s4"); A(f"s_add_u32 s3, s3, {WS_KVA}")
                    A("v_lshlrev_b32 v9, 7, v166")
                    if self.o.get("tsplit", 1): A("s_mov_b32 exec_hi, 0")
                    A(f"buffer_load_dword v8, v9, s[{SWS}:{SWS+3}], s3 offen")
                    A("s_mov_b64 exec, -1")
                    self.vm_add("touch", 1)
                if self.o.get("tsplit", 1) and self.rot == 4 and 10 <= nxt <= 13:
                    lab = A.newlabel("L_t")
                    A(f"s_cmp_lg_u32 s{S_CLS}, {nxt-10}"); A(f"s_cbranch_scc1 {lab}")
                    A(f"s_lshl_b32 s3, s{S_HP}, 19"); A(f"s_lshl_b32 s4, s{S_RB}, 15"); A("s_add_u32 s3, s3, s4")
                    A(f"s_lshl_b32 s4, s{S_U}, 13"); A("s_add_u32 s3, s3, s4"); A(f"s_add_u32 s3, s3, {WS_KVA}")
                    A("v_lshlrev_b32 v9, 7, v166")
                    A("s_mov_b32 exec_lo, 0")
                    A(f"buffer_load_dword v8, v9, s[{SWS}:{SWS+3}], s3 offen")
                    A("s_mov_b64 exec, -1")
                    A.label(lab)
            with self.only(3):
                kst(4, s); A("s_lshl_b32 s4, s4, 7")
                A(f"v_add_u32 v19, {(s % G_NSLOT) * G_STAGE}, v18"); A("v_add_u32 v28, s4, v17")
                A("ds_read_b128 v[20:23], v19"); A("ds_read_b128 v[64:67], v28"); A("ds_read_b128 v[68:71], v28 offset:2048")
                A("s_waitcnt lgkmcnt(0)")
                for i in range(4):
                    A(f"v_dot2c_f32_bf16 v24, v{20+i}, v{64+i}")
                    A(f"v_dot2c_f32_bf16 v25, v{20+i}, v{68+i}")
            if s == 15:
                with self.only(0):
                    lab = A.newlabel("L_tagok")
                    save = list(self.vm)
                    self.vm_wait("tag")
                    A("v_readfirstlane_b32 s3, v26")
                    A("s_nop 1")
                    A("s_cmp_lg_u32 s3, 0"); A(f"s_cbranch_scc1 {lab}")
                    self.poll_val(SDBG, 27, "0", 1, 0, 26, ne=True)
                    A.label(lab)
                    A(f"v_mov_b32 v14, {L_TAG}"); A("s_mov_b64 exec, 1"); A("ds_write_b32 v14, v26"); A("s_mov_b64 exec, -1")
                    A("s_waitcnt lgkmcnt(0)")
                    self.vm = save
            if s + 1 < 16: self.vm_wait(("g", s + 1))
            if self.o.get("st1", 0): self.stampit(167)
            A("s_barrier")
        with self.only(0):
            A(f"v_add_u32 v14, {L_CNT}, v165")
            for i in range(4): A(f"v_mov_b32 v{20+i}, 0")
            A("ds_write_b128 v14, v[20:23]"); A("ds_write_b128 v14, v[20:23] offset:1024"); A("ds_write_b128 v14, v[20:23] offset:2048")
            A("s_waitcnt lgkmcnt(0)")
        A("s_barrier")
        self.read_tag(14)
        self.stampit(167)

    def helper_p2(self):
        A = self.A
        S_KVB = S_TMP
        self.vm_reset()
        A(f"s_lshl_b32 s{S_KVB}, s{S_HP}, 19")
        for u in range(1, 4):
            A(f"s_cmp_eq_u32 s{S_U}, {u}"); A(f"s_cbranch_scc1 L_h2_{u}")
        for u in range(4):
            if u: A.label(f"L_h2_{u}")
            self.helper_p2_wave(u)
            self.stamp_flush(167, 14, 166)
            A("s_endpgm")

    def rg_finalize(self):
        A = self.A
        for v in (24, 25):
            A(f"s_nop 1\nv_add_f32_dpp v{v}, v{v}, v{v} quad_perm:[1,0,3,2] row_mask:0xf bank_mask:0xf")
            A(f"s_nop 1\nv_add_f32_dpp v{v}, v{v}, v{v} quad_perm:[2,3,0,1] row_mask:0xf bank_mask:0xf")
            A(f"s_nop 1\nv_add_f32_dpp v{v}, v{v}, v{v} row_half_mirror row_mask:0xf bank_mask:0xf")
        A("v_cvt_pk_bf16_f32 v26, v25, v25")
        A("v_lshlrev_b32 v26, 16, v26")
        A(f"v_mul_f32 v26, {hex(f32bits(-LOG2E))}, v26")
        A("v_exp_f32 v26, v26")
        A("s_nop 0")
        A("v_add_f32 v26, 1.0, v26")
        A("v_rcp_f32 v26, v26")
        A("s_nop 0")
        A("v_cvt_pk_bf16_f32 v26, v26, v26")
        A("v_lshlrev_b32 v26, 16, v26")
        A(f"s_lshl_b32 s3, s{S_RB}, 7"); A(f"s_lshl_b32 s4, s{S_HP}, 3"); A("s_add_u32 s3, s3, s4")
        A("v_lshrrev_b32 v27, 3, v166")
        A("v_add_u32 v27, s3, v27")
        A("v_lshlrev_b32 v14, 2, v27")
        A("s_mov_b32 exec_lo, 0x01010101\ns_mov_b32 exec_hi, 0x01010101")
        A(f"s_mov_b32 s5, {WS_G}")
        A(f"buffer_store_dword v26, v14, s[{SWS}:{SWS+3}], s5 offen sc1")
        A("s_mov_b64 exec, -1")
        A("v_cvt_pk_bf16_f32 v15, v24, v24")
        A("v_lshlrev_b32 v15, 16, v15")
        A("v_ashrrev_i32 v16, 31, v15")
        A("v_or_b32 v16, 0x80000000, v16")
        A("v_and_b32 v16, 0xffff0000, v16")
        A("v_xor_b32 v15, v15, v16")
        A("v_sub_u32 v27, 2047, v27")
        A("v_or_b32 v15, v15, v27")
        A("s_nop 1")
        A("v_readlane_b32 s3, v15, 0")
        for i in range(1, 8):
            A(f"v_readlane_b32 s4, v15, {8*i}")
            A("s_nop 1")
            A("s_max_u32 s3, s3, s4")
        A(f"s_mov_b32 s{S_KEY}, s3")
        self.vm_add("g", 1)
    def rg_count(self):
        A = self.A
        self.vm_wait("g")
        A("s_lshl_b32 s3, s2, 3"); A(f"s_add_u32 s3, s3, {WS_KEYS}")
        A("v_mov_b32 v14, 0"); A(f"v_mov_b32 v16, s{S_KEY}"); A(f"v_mov_b32 v17, s{S_TAG}")
        A("s_mov_b64 exec, 1")
        A(f"buffer_store_dwordx2 v[16:17], v14, s[{SWS}:{SWS+3}], s3 offen sc1")
        A("s_mov_b64 exec, -1")
        self.vm_add("key")

    def lds_spin_ge(self, addr, stride, n, want, sleep=2, bound=None):
        A = self.A
        lab = A.newlabel("L_spin"); done = A.newlabel("L_spind")
        A(f"v_min_u32 v14, {n-1}, v166")
        if stride > 1: A(f"v_mul_u32_u24 v14, {stride}, v14")
        A(f"v_add_u32 v14, {addr}, v14")
        A(f"s_mov_b32 s96, {bound or SPIN_MAX*16}")
        A.label(lab)
        A("ds_read_b32 v16, v14")
        A("s_waitcnt lgkmcnt(0)")
        A(f"v_cmp_gt_u32 vcc, {want}, v16")
        A("s_sub_u32 s96, s96, 1"); A("s_cmp_eq_u32 s96, 0"); A(f"s_cbranch_scc1 {done}")
        A("s_nop 2")
        A(f"s_cbranch_vccz {done}")
        A(f"s_sleep {min(127, sleep * self.o.get('slmul', 1))}")
        A(f"s_branch {lab}")
        A.label(done)

    def class_tick(self, name, sleep=4):
        A = self.A
        tab = dict(R0=[5,5,5,5], R1=[8,8,8,8], B=[2,3,4,5], W1=[8,9,10,12], W2=[12,13,14,15], A=[3,2,2,3], M=[4,5,3,4], C=[6,6,5,6], D=[9,8,8,8])
        tab.update(self.o.get("ticks", {}))
        t = tab[name]
        A(f"s_bfe_u32 s5, s{S_RB}, 0x20001"); A("s_lshl_b32 s5, s5, 2")
        A(f"s_lshr_b32 s5, {hex(sum(v << (4*i) for i, v in enumerate(t)))}, s5"); A("s_and_b32 s5, s5, 15"); A(f"s_mul_i32 s6, s5, {max(1, 10 // self.o.get('slmul', 1))}")
        self.lds_spin_ge(L_LAND, 1, 1, "s5", sleep, bound="s6")

    def wo_setup(self):
        A = self.A
        srd(A, SA, P_WO, 1024 * 1024 * 2)
        A("v_lshrrev_b32 v19, 3, v166")
        A("v_lshl_add_u32 v19, v19, 11, v13")
    def issue_wo(self, q):
        A = self.A; S_B = S_TMP + 3
        base = q * 32768
        A("s_lshr_b32 s3, s2, 3"); A("s_and_b32 s3, s3, 15"); A("s_lshl_b32 s3, s3, 7")
        A(f"s_add_u32 s{S_B}, s3, {q*256*2048}")
        for i in range(32):
            A(f"s_mov_b32 m0, {base + i*1024}")
            if i: A(f"s_add_u32 s{S_B}, s{S_B}, 16384")
            else: A("s_nop 0")
            A(f"buffer_load_dwordx4 v19, s[{SA}:{SA+3}], s{S_B} offen lds")

    def helper_p2_wave(self, u):
        if u == 0: self.kv_loader()
        elif u == 1: self.b_wave()
        else: self.moe_wave(u - 2)

    def kv_loader(self):
        A = self.A
        S_KVB, S_B, S_MODE = S_TMP, S_TMP+3, S_TMP+4
        def landed(v):
            A(f"v_mov_b32 v14, {L_LAND}"); A(f"v_mov_b32 v15, {v}")
            A("ds_write_b32 v14, v15")
        A("v_lshrrev_b32 v17, 3, v166"); A(f"v_add_u32 v17, s{S_RB}, v17"); A("v_and_b32 v17, 7, v17")
        A(f"s_and_b32 s4, s{S_RB}, 8"); A(f"s_lshl_b32 s5, s{S_HP}, 4"); A("s_add_u32 s4, s4, s5")
        A("v_add_u32 v17, s4, v17")
        A("v_and_b32 v18, 3, v166"); A("v_lshlrev_b32 v18, 2, v18"); A("v_lshl_add_u32 v20, v17, 7, v18"); A(f"v_add_u32 v20, {WS_FA}, v20")
        A("v_lshlrev_b32 v17, 2, v17"); A(f"v_add_u32 v17, {WS_F1}, v17")
        A("v_and_b32 v19, 4, v166"); A("v_cmp_eq_u32 vcc, 0, v19")
        A(f"v_mov_b32 v19, s{S_TAG}"); A(f"v_mov_b32 v16, s{S_XCC}")
        A("v_cndmask_b32 v21, v17, v20, vcc"); A("v_cndmask_b32 v22, v19, v16, vcc")
        A(f"s_mov_b64 s[{S_MODE}:{S_MODE+1}], 0")
        A("s_getpc_b64 s[10:11]")
        A.label("L_kvpc")
        A("s_add_u32 s10, s10, L_kvsub-L_kvpc"); A("s_addc_u32 s11, s11, 0")
        A("s_branch L_kvsub_end")
        A.raw(".p2align 6")
        A.label("L_kvsub")
        for hb in range(8):
            A(f"s_mov_b32 m0, s{S_TMP+2}")
            A(f"s_add_u32 s{S_TMP+2}, s{S_TMP+2}, 4096")
            for i in range(4):
                A(f"buffer_load_dwordx4 v165, s[{SWS}:{SWS+3}], s{S_B} offen offset:{1024*i} {self.o.get('kvfl', 'sc1')} lds")
            A(f"s_add_u32 s{S_B}, s{S_B}, 4096")
        A("s_setpc_b64 s[12:13]")
        A.label("L_kvsub_end")
        def wait_free(need, prev):
            lab = A.newlabel("L_free")
            A("v_min_u32 v14, 7, v166"); A("v_lshlrev_b32 v14, 8, v14"); A(f"v_add_u32 v14, {L_PROG}, v14")
            A("ds_read_b32 v16, v14"); A("s_waitcnt lgkmcnt(0)")
            A(f"v_cmp_gt_u32 vcc, {need}, v16"); A("s_nop 4")
            A(f"s_cbranch_vccz {lab}")
            A("s_waitcnt vmcnt(0)"); landed(prev)
            self.lds_spin_ge(L_PROG, 256, 8, need, 4)
            A.label(lab)
        def poll_block(s_):
            lab = A.newlabel("L_poll"); done = A.newlabel("L_polld")
            A(f"s_bitcmp1_b64 s[{S_MODE}:{S_MODE+1}], {8*s_}"); A(f"s_cbranch_scc1 {done}")
            if s_ >= 4:
                A("s_waitcnt vmcnt(0)"); landed(s_ - 1)
            A(f"s_mov_b32 s96, {SPIN_MAX}")
            A("s_mov_b32 exec_lo, 0x0f0f0f00"); A("s_mov_b32 exec_hi, 0x0f0f0f0f")
            A.label(lab)
            A(f"buffer_load_dword v16, v21, s[{SWS}:{SWS+3}], 0 offen sc1")
            A("s_waitcnt vmcnt(0)")
            A("v_cmp_eq_u32 vcc, v22, v16")
            A("s_sub_u32 s96, s96, 1"); A("s_nop 2")
            A("s_lshr_b64 s[4:5], vcc, 1"); A("s_and_b64 s[4:5], s[4:5], vcc"); A("s_lshr_b64 s[6:7], s[4:5], 2"); A(f"s_and_b64 s[{S_MODE}:{S_MODE+1}], s[4:5], s[6:7]")
            A(f"s_bitcmp1_b64 s[{S_MODE}:{S_MODE+1}], {8*s_}"); A(f"s_cbranch_scc1 {done}")
            A(f"s_bitcmp1_b64 vcc, {8*s_+4}"); A(f"s_cbranch_scc1 {done}")
            A("s_cmp_eq_u32 s96, 0"); A(f"s_cbranch_scc1 {done}")
            A(f"s_cmp_lt_u32 s96, {SPIN_MAX-8}")
            A("s_cselect_b32 exec_lo, 0x1f1f1f00, exec_lo"); A("s_cselect_b32 exec_hi, 0x1f1f1f1f, exec_hi")
            A("s_sleep 1")
            A(f"s_branch {lab}")
            A.label(done)
            A("s_mov_b64 exec, -1")
        for s in range(1, 16):
            if s - 1 == OPS_AT:
                self.lds_spin_ge(L_CNT + 20, 1, 1, 1)
            if s in (8, 12):
                lab = A.newlabel("L_rm")
                A(f"v_mov_b32 v14, {L_LAND + 8}"); A("ds_read_b32 v16, v14"); A("s_waitcnt lgkmcnt(0)")
                A(f"v_cmp_gt_u32 vcc, {1 if s == 8 else 2}, v16"); A("s_nop 4")
                A(f"s_cbranch_vccz {lab}")
                A("s_waitcnt vmcnt(0)"); landed(s - 1)
                self.lds_spin_ge(L_LAND + 8, 1, 1, 1 if s == 8 else 2, 2)
                A.label(lab)
            if s in (2, 3):
                A("s_waitcnt vmcnt(0)"); landed(s - 1)
            if s >= 4: wait_free(s - 3, s - 1)
            if s == 4: self.lds_spin_ge(L_CNT + 16, 1, 1, 1)
            if s <= 7:
                poll_block(s); bit = 8 * s
                A(f"s_add_u32 s3, s{S_RB}, {s}"); A("s_and_b32 s3, s3, 7"); A(f"s_and_b32 s4, s{S_RB}, 8"); A(f"s_or_b32 s{S_B}, s3, s4")
                A(f"s_bitcmp1_b64 s[{S_MODE}:{S_MODE+1}], {bit}")
                A(f"s_cselect_b32 s6, {WS_KVA}, 0")
            else:
                g4 = 0 if s < 12 else 4
                A(f"s_add_u32 s3, s{S_RB}, {s}"); A("s_and_b32 s3, s3, 3"); A(f"s_and_b32 s4, s{S_RB}, 8"); A(f"s_xor_b32 s4, s4, {8 + g4}"); A(f"s_or_b32 s{S_B}, s3, s4")
                A("s_mov_b32 s6, 0")
            self.stampit(167)
            A(f"s_lshl_b32 s{S_B}, s{S_B}, 15"); A(f"s_add_u32 s{S_B}, s{S_B}, s{S_KVB}"); A(f"s_add_u32 s{S_B}, s{S_B}, s6")
            if self.o.get("sub", 1):
                A(f"s_mov_b32 s{S_TMP+2}, {(s % KV_NSLOT) * KV_SLOT}")
                if not (self.o.get("nodma", 0) and s >= 4): A(f"s_swappc_b64 s[12:13], s[10:11]")
            else:
              for hb in range(8):
                A(f"s_mov_b32 m0, {(s % KV_NSLOT) * KV_SLOT + hb * 4096}")
                if hb: A(f"s_add_u32 s{S_B}, s{S_B}, 4096")
                else: A("s_nop 0")
                for i in range(4):
                    if self.o.get("nodma", 0) and s >= 4: continue
                    A(f"buffer_load_dwordx4 v165, s[{SWS}:{SWS+3}], s{S_B} offen offset:{1024*i} {self.o.get('kvfl', 'sc1')} lds")
            if s >= 4:
                A("s_waitcnt vmcnt(32)"); landed(s - 1)
            self.stampit(167)
        self.wo_setup()
        for q, need in ((0, 13), (1, 14), (2, 15)):
            wait_free(need, 16 + q)
            self.issue_wo(q)
            A("s_waitcnt vmcnt(32)"); landed(16 + q)
            self.stampit(167)
        A("s_waitcnt vmcnt(0)"); landed(19)

    def b_wave(self):
        A = self.A
        S_KVB, S_BS = S_TMP, S_TMP + 9
        BR = 32
        for i in range(32):
            if i in (12, 24): A("s_waitcnt lgkmcnt(4)")
            A(f"ds_read_b128 {vr(BR+4*i,4)}, v165 offset:{1024*i}")
        A(f"s_lshl_b32 s{S_BS}, s{S_RB}, 15"); A(f"s_add_u32 s{S_BS}, s{S_BS}, s{S_KVB}")
        A(f"v_mov_b32 v14, {L_CNT + 16}"); A("v_mov_b32 v15, 1")
        A("s_waitcnt lgkmcnt(0)")
        A("ds_write_b32 v14, v15")
        self.class_tick("B")
        self.stampit(167)
        for i in range(32):
            A(f"buffer_store_dwordx4 {vr(BR+4*i,4)}, v165, s[{SWS}:{SWS+3}], s{S_BS} offen offset:{1024*(i&3)} sc1")
            if (i & 3) == 3: A(f"s_add_u32 s{S_BS}, s{S_BS}, 4096")
        A("s_waitcnt vmcnt(0)")
        def c():
            A(f"s_lshl_b32 s3, s{S_HP}, 4"); A(f"s_add_u32 s3, s3, s{S_RB}"); A("s_lshl_b32 s3, s3, 2"); A(f"s_add_u32 s3, s3, {WS_F1}")
        self.set_flag(c)
        self.stampit(167)
        def remote(g):
            self.class_tick(("R0", "R1")[g])
            A(f"s_lshl_b32 s5, s{S_HP}, 4"); A(f"s_and_b32 s4, s{S_RB}, 8"); A("s_xor_b32 s4, s4, 8"); A("s_add_u32 s5, s5, s4")
            A("s_lshl_b32 s5, s5, 2"); A(f"s_add_u32 s5, s5, {WS_F1 + 16*g}")
            A("v_lshlrev_b32 v14, 2, v166")
            self.poll_val(SWS, 14, "s5", 0xf, f"s{S_TAG}", 16, sleep=10)
            A(f"v_mov_b32 v14, {L_LAND + 8}"); A(f"v_mov_b32 v15, {g+1}"); A("ds_write_b32 v14, v15")
            A(f"s_and_b32 s3, s{S_RB}, 3"); A(f"s_and_b32 s4, s{S_RB}, 8"); A(f"s_xor_b32 s4, s4, {8 + 4*g}"); A("s_or_b32 s3, s3, s4")
            A("s_lshl_b32 s3, s3, 15"); A(f"s_add_u32 s3, s3, s{S_KVB}")
            A(f"s_and_b32 s4, s{S_RB}, 4"); A("s_lshl_b32 s4, s4, 12"); A("s_add_u32 s3, s3, s4")
            A("v_lshlrev_b32 v14, 7, v166")
            for i in range(2):
                A(f"buffer_load_dword v16, v14, s[{SWS}:{SWS+3}], s3 offen sc1"); A("s_add_u32 s3, s3, 8192")
            self.stampit(167)
        remote(0)
        self.wo_setup()
        self.class_tick("W1")
        A("s_lshr_b32 s3, s2, 3"); A("s_and_b32 s3, s3, 15"); A("s_lshl_b32 s3, s3, 7"); A(f"s_add_u32 s3, s3, {3*256*2048}")
        for i in range(32):
            A(f"buffer_load_dwordx4 {vr(32+4*i,4)}, v19, s[{SA}:{SA+3}], s3 offen"); A("s_add_u32 s3, s3, 16384")
        self.stampit(167)
        remote(1)
        A(f"v_add_u32 v20, {3*32768}, v165")
        A("s_waitcnt vmcnt(0)")
        self.lds_spin_ge(L_PROG, 256, 8, 16, 2)
        for i in range(32):
            if i in (12, 24): A("s_waitcnt lgkmcnt(4)")
            A(f"ds_write_b128 v20, {vr(32+4*i,4)} offset:{1024*i}")
        A(f"v_mov_b32 v14, {L_CNT}"); A("v_mov_b32 v15, 1")
        A("s_waitcnt lgkmcnt(0)")
        A("ds_write_b32 v14, v15")
        self.stampit(167)

    def moe_wave(self, m):
        A = self.A
        self.m = m
        self.vm_reset()
        if m == 1:
            self.rg_finalize(); self.rg_count()
        else:
            self.lds_spin_ge(L_LAND, 1, 1, self.o.get("key_at", 4), 4, bound=40)
            self.get_key()
            A(f"v_mov_b32 v14, {L_CNT + 28}"); A(f"v_mov_b32 v15, s{S_KEY}"); A("ds_write_b32 v14, v15"); A("s_waitcnt lgkmcnt(0)")
            A(f"v_mov_b32 v14, {L_CNT + 20}"); A("v_mov_b32 v15, 1"); A("ds_write_b32 v14, v15")
        if self.moe:
            steps = self.moe_steps()
            for k in ("gate_issue", "key", "gate_mma", "up_mma", "h", "down_mma"):
                steps[k](); self.stampit(167)

    def poll_val(self, srd_, voff, soff, mask, want, vtmp, ne=False, sleep=1):
        A = self.A
        lab = A.newlabel("L_poll"); done = A.newlabel("L_polld")
        A(f"s_mov_b32 s96, {SPIN_MAX}")
        A(f"s_mov_b32 s97, {want}")
        A(f"s_mov_b64 exec, {hex(mask)}")
        A.label(lab)
        if soff.startswith("s"):
            A(f"buffer_load_dword v{vtmp}, v{voff}, s[{srd_}:{srd_+3}], {soff} offen sc1")
        else:
            A(f"buffer_load_dword v{vtmp}, v{voff}, s[{srd_}:{srd_+3}], 0 offen offset:{soff} sc1")
        A("s_waitcnt vmcnt(0)")
        A(f"v_cmp_{'eq' if ne else 'ne'}_u32 vcc, s97, v{vtmp}")
        A("s_sub_u32 s96, s96, 1")
        A("s_cmp_eq_u32 s96, 0")
        A(f"s_cbranch_scc1 {done}")
        A("s_nop 2")
        A(f"s_cbranch_vccz {done}")
        A(f"s_sleep {sleep}")
        A(f"s_branch {lab}")
        A.label(done)
        A("s_mov_b64 exec, -1")
        self.vm = []

    def get_key(self):
        A = self.A
        lab = A.newlabel("L_poll"); done = A.newlabel("L_polld")
        A(f"s_mov_b32 s96, {SPIN_MAX}")
        A(f"s_mov_b32 s5, {WS_KEYS}")
        A.label(lab)
        A(f"buffer_load_dwordx4 v[20:23], v165, s[{SWS}:{SWS+3}], s5 offen sc1")
        A(f"buffer_load_dwordx4 v[24:27], v165, s[{SWS}:{SWS+3}], s5 offen offset:1024 sc1")
        A("s_waitcnt vmcnt(0)")
        for i, v in enumerate((21, 23, 25, 27)): A(f"v_xor_b32 v{28+i}, s{S_TAG}, v{v}")
        A("v_or3_b32 v28, v28, v29, v30"); A("v_or_b32 v28, v28, v31")
        A("v_cmp_ne_u32 vcc, 0, v28")
        A("s_sub_u32 s96, s96, 1"); A("s_cmp_eq_u32 s96, 0"); A(f"s_cbranch_scc1 {done}")
        A("s_nop 2")
        A(f"s_cbranch_vccz {done}")
        A("s_sleep 16")
        A(f"s_branch {lab}")
        A.label(done)
        self.vm = []
        self.key_reduce(20, 16)

    def key_reduce(self, v, t):
        A = self.A
        A(f"v_max_u32 v{t}, v{v}, v{v+2}"); A(f"v_max3_u32 v{t}, v{t}, v{v+4}, v{v+6}")
        for d in ("quad_perm:[1,0,3,2]", "quad_perm:[2,3,0,1]", "row_half_mirror", "row_mirror"):
            A("s_nop 1"); A(f"v_max_u32_dpp v{t}, v{t}, v{t} {d} row_mask:0xf bank_mask:0xf")
        A("s_nop 1")
        A(f"v_readlane_b32 s{S_KEY}, v{t}, 0")
        for l in (16, 32, 48):
            A(f"v_readlane_b32 s3, v{t}, {l}"); A("s_nop 1"); A(f"s_max_u32 s{S_KEY}, s{S_KEY}, s3")
        A(f"s_and_b32 s3, s{S_KEY}, 2047")
        A(f"s_sub_u32 s{S_SEL}, 2047, s3")

    def moe_dma(self, items):
        A = self.A
        for k, (sr_, sreg, off, stride, vreg) in enumerate(items):
            A(f"s_add_u32 s3, s{sreg}, {off}")
            for i in range(4):
                A(f"s_mov_b32 m0, {L_R2 + self.m*12288 + k*4096 + i*1024}")
                if i: A(f"s_add_u32 s3, s3, {8*stride}")
                else: A("s_nop 0")
                A(f"buffer_load_dwordx4 v{vreg}, s[{sr_}:{sr_+3}], s3 offen {self.o.get('moefl', 'nt')} lds")

    def moe_frags(self, k, dst):
        A = self.A
        for c in range(4):
            A(f"ds_read_b64_tr_b16 {vr(dst+4*c,2)}, v17 offset:{k*4096 + c*32}")
            A(f"ds_read_b64_tr_b16 {vr(dst+4*c+2,2)}, v17 offset:{k*4096 + 2048 + c*32}")
        A("s_waitcnt lgkmcnt(0)")
    def moe_mma(self, xf, bf, acc, first):
        for c in range(4): self.A(mfma16(acc + 4*c, xf, bf + 4*c, None if first else acc + 4*c))
    def moe_pick(self, ACC, res):
        A = self.A
        A("v_lshrrev_b32 v15, 4, v166")
        A("s_nop 7")
        A("v_cmp_eq_u32 vcc, 1, v15"); A(f"v_mov_b32 v{res}, v{ACC}"); A("s_nop 0"); A(f"v_cndmask_b32 v{res}, v{res}, v{ACC+4}, vcc")
        A("v_cmp_eq_u32 vcc, 2, v15"); A("s_nop 1"); A(f"v_cndmask_b32 v{res}, v{res}, v{ACC+8}, vcc")
        A("v_cmp_eq_u32 vcc, 3, v15"); A("s_nop 1"); A(f"v_cndmask_b32 v{res}, v{res}, v{ACC+12}, vcc")

    def moe_steps(self):
        A = self.A; m = self.m
        S_M, S_MD, SC = S_TMP + 6, S_TMP + 7, 92
        XF = 40; ACC = 72; ACU = 56; BF = 100
        DFk = lambda k: 148 if k == 0 else BF + 16 * (k - 1)
        gk0 = 128 * m
        dst = (4, 3)[m]; dk0 = 128 * m
        def tick(i): self.class_tick("AMCD"[i])
        G = lambda k: (SA, S_M, k*32*7168, 7168, 18)
        U = lambda k: (SB, S_M, k*32*7168, 7168, 18)
        D = lambda k: (SC, S_MD, k*32*2048, 2048, 19)
        def st_gate_issue():
            srd(A, SA, P_WG, 1024 * 3584 * 2); srd(A, SB, P_WU, 1024 * 3584 * 2); srd(A, SC, P_WD, 3584 * 1024 * 2)
            A("s_cmp_ge_u32 s2, 224")
            A(f"s_cselect_b32 s{SA+2}, 0, s{SA+2}"); A(f"s_cselect_b32 s{SB+2}, 0, s{SB+2}")
            A("v_lshrrev_b32 v19, 3, v166"); A("s_movk_i32 s3, 7168"); A("v_mul_lo_u32 v18, v19, s3")
            A("v_and_b32 v15, 7, v166"); A("v_lshl_add_u32 v18, v15, 4, v18")
            A("v_lshlrev_b32 v19, 11, v19"); A("v_lshl_add_u32 v19, v15, 4, v19")
            A("v_lshrrev_b32 v17, 2, v166"); A("v_lshlrev_b32 v17, 7, v17")
            A("v_and_b32 v15, 3, v166"); A("v_lshl_add_u32 v17, v15, 3, v17")
            A(f"v_add_u32 v17, {L_R2 + m*12288}, v17")
            A("s_and_b32 s3, s2, 3"); A("s_lshl_b32 s3, s3, 8"); A(f"s_add_u32 s3, s3, {gk0}")
            A(f"s_mul_i32 s{S_M}, s3, 7168")
            A("s_lshr_b32 s3, s2, 2"); A("s_lshl_b32 s3, s3, 7"); A(f"s_add_u32 s{S_M}, s{S_M}, s3")
            A("s_lshr_b32 s3, s2, 4"); A("s_mul_i32 s3, s3, 224"); A(f"s_add_u32 s3, s3, {dk0}")
            A(f"s_lshl_b32 s{S_MD}, s3, 11")
            A("s_and_b32 s3, s2, 15"); A("s_lshl_b32 s3, s3, 7"); A(f"s_add_u32 s{S_MD}, s{S_MD}, s3")
            tick(0)
            self.lds_spin_ge(L_PROG, 256, 8, 1, 4)
            self.moe_dma([G(0), G(1), G(2)])
        def st_key():
            self.lds_spin_ge(L_CNT + 20, 1, 1, 1, 4)
            A(f"v_mov_b32 v14, {L_CNT + 28}"); A("ds_read_b32 v14, v14"); A("s_waitcnt vmcnt(0) lgkmcnt(0)")
            A(f"v_readfirstlane_b32 s{S_KEY}, v14"); A("s_nop 1")
            A(f"s_and_b32 s3, s{S_KEY}, 2047"); A(f"s_sub_u32 s{S_SEL}, 2047, s3")
            A("v_lshrrev_b32 v15, 4, v166"); A("v_lshlrev_b32 v15, 3, v15")
            A("s_and_b32 s3, s2, 3"); A("s_lshl_b32 s3, s3, 9"); A(f"s_add_u32 s3, s3, {gk0*2}")
            A(f"s_lshl_b32 s4, s{S_SEL}, 11"); A("s_add_u32 s3, s3, s4")
            for i in range(8):
                A(f"buffer_load_dwordx2 {vr(XF+2*i,2)}, v15, s[{SX}:{SX+3}], s3 offen offset:{32*i}")
            for k in range(3): self.moe_frags(k, BF + 16*k)
            tick(1)
            self.moe_dma([G(3), U(0), U(1)])
            A("s_waitcnt vmcnt(12)")
            for k in range(3): self.moe_mma(XF + 4*k, BF + 16*k, ACC, k == 0)
        def st_gate_mma():
            A("s_waitcnt vmcnt(0)")
            for k in range(3): self.moe_frags(k, BF + 16*k)
            tick(2)
            self.moe_dma([U(2), U(3), D(0)])
            self.moe_mma(XF + 12, BF, ACC, False)
            self.moe_mma(XF, BF + 16, ACU, True); self.moe_mma(XF + 4, BF + 32, ACU, False)
            self.moe_pick(ACC, 90)
        def st_up_mma():
            A("s_waitcnt vmcnt(0)")
            self.moe_frags(0, BF); self.moe_frags(1, BF + 16); self.moe_frags(2, DFk(0))
            self.moe_mma(XF + 8, BF, ACU, False); self.moe_mma(XF + 12, BF + 16, ACU, False)
            self.moe_pick(ACU, 91)
            A("v_lshlrev_b32 v14, 2, v166"); A(f"v_add_u32 v15, {L_PART + m*512}, v14")
            A("ds_write_b32 v15, v90"); A("ds_write_b32 v15, v91 offset:256")
            A("s_waitcnt lgkmcnt(0)")
            def fin():
                lab = A.newlabel("L_skip"); A("s_cmp_ge_u32 s2, 224"); A(f"s_cbranch_scc1 {lab}")
                A(f"v_lshlrev_b32 v14, 2, v166"); A(f"v_add_u32 v15, {L_PART}, v14")
                A("ds_read_b32 v92, v15"); A("ds_read_b32 v94, v15 offset:256"); A("ds_read_b32 v96, v15 offset:512"); A("ds_read_b32 v97, v15 offset:768")
                A(f"v_mov_b32 v93, s{S_TAG}"); A(f"v_mov_b32 v95, s{S_TAG}"); A("v_lshlrev_b32 v14, 3, v166")
                A("s_waitcnt lgkmcnt(0)")
                A("v_add_f32 v92, v92, v96"); A("v_add_f32 v94, v94, v97")
                A("s_and_b32 s3, s2, 3"); A(f"s_mul_i32 s3, s3, {2*3584*8}"); A("s_lshr_b32 s4, s2, 2"); A("s_lshl_b32 s4, s4, 9")
                A("s_add_u32 s3, s3, s4"); A(f"s_add_u32 s3, s3, {WS_GU}"); A(f"s_add_u32 s4, s3, {3584*8}")
                A(f"buffer_store_dwordx2 v[92:93], v14, s[{SWS}:{SWS+3}], s3 offen sc1")
                A(f"buffer_store_dwordx2 v[94:95], v14, s[{SWS}:{SWS+3}], s4 offen sc1")
                A.label(lab)
            self.last_arriver(1, fin, 2)
            tick(3)
            self.moe_dma([D(k) for k in range(1, dst)])
            A("s_waitcnt vmcnt(0)")
            for k in range(1, dst): self.moe_frags(k - 1, DFk(k))
        def st_h():
            self.lds_spin_ge(L_LAND, 1, 1, self.o.get("h_at", 11), 8)
            A("s_lshr_b32 s3, s2, 4"); A("s_mul_i32 s3, s3, 224"); A(f"s_add_u32 s3, s3, {dk0}"); A("s_lshl_b32 s3, s3, 3")
            A(f"v_min_u32 v14, {16*dst-1}, v166"); A("v_lshlrev_b32 v14, 4, v14"); A("v_add_u32 v14, s3, v14")
            lab = A.newlabel("L_poll"); done = A.newlabel("L_polld")
            A(f"s_mov_b32 s96, {SPIN_MAX}")
            A.label(lab)
            for kq in range(4):
                for k in range(2):
                    A(f"s_mov_b32 s5, {WS_GU + (kq*2+k)*3584*8}")
                    A(f"buffer_load_dwordx4 {vr(56+8*kq+4*k,4)}, v14, s[{SWS}:{SWS+3}], s5 offen sc1")
            A("s_waitcnt vmcnt(0)")
            A(f"v_xor_b32 v16, s{S_TAG}, v57")
            for i in range(1, 16):
                A(f"v_xor_b32 v17, s{S_TAG}, v{57+2*i}"); A("v_or_b32 v16, v16, v17")
            A("v_cmp_ne_u32 vcc, 0, v16")
            A("s_sub_u32 s96, s96, 1"); A("s_cmp_eq_u32 s96, 0"); A(f"s_cbranch_scc1 {done}")
            A("s_nop 2")
            A(f"s_cbranch_vccz {done}")
            A("s_sleep 24")
            A(f"s_branch {lab}")
            A.label(done)
        def st_down_mma():
            for k, o in enumerate((0, 2, 4, 6)):
                A(f"v_add_f32 v{88+k}, v{56+o}, v{64+o}"); A(f"v_add_f32 v{92+k}, v{72+o}, v{80+o}"); A(f"v_add_f32 v{88+k}, v{88+k}, v{92+k}")
            A("v_cvt_pk_bf16_f32 v92, v88, v89"); A("v_cvt_pk_bf16_f32 v93, v90, v91")
            A("v_lshlrev_b32 v88, 16, v92"); A("v_and_b32 v89, 0xffff0000, v92")
            A("v_lshlrev_b32 v90, 16, v93"); A("v_and_b32 v91, 0xffff0000, v93")
            for k in range(2): A(f"v_mul_f32 v{92+k}, {hex(f32bits(-LOG2E))}, v{88+k}")
            for k in range(2): A(f"v_exp_f32 v{92+k}, v{92+k}")
            A("s_nop 0")
            for k in range(2): A(f"v_add_f32 v{92+k}, 1.0, v{92+k}")
            for k in range(2): A(f"v_rcp_f32 v{92+k}, v{92+k}")
            A("s_nop 0")
            for k in range(2): A(f"v_mul_f32 v{92+k}, v{88+k}, v{92+k}")
            A("v_cvt_pk_bf16_f32 v92, v92, v93")
            A("v_lshlrev_b32 v88, 16, v92"); A("v_and_b32 v89, 0xffff0000, v92")
            A("v_mul_f32 v88, v88, v90"); A("v_mul_f32 v89, v89, v91")
            A("v_cvt_pk_bf16_f32 v90, v88, v89")
            A("v_lshlrev_b32 v14, 2, v166"); A(f"v_add_u32 v14, {L_H + m*256}, v14")
            A("ds_write_b32 v14, v90")
            A("v_lshrrev_b32 v15, 4, v166"); A("v_lshlrev_b32 v15, 3, v15"); A(f"v_add_u32 v15, {L_H + m*256}, v15")
            A("s_waitcnt lgkmcnt(0)")
            for i in range(2 * dst): A(f"ds_read_b64 {vr(XF+2*i,2)}, v15 offset:{32*i}")
            A("s_waitcnt lgkmcnt(0)")
            for k in range(dst): self.moe_mma(XF + 4*k, DFk(k), ACC, k == 0)
            self.moe_pick(ACC, 90)
            A("v_lshlrev_b32 v14, 2, v166"); A(f"v_add_u32 v15, {L_PART + 1536 + m*256}, v14")
            A("ds_write_b32 v15, v90")
            A("s_waitcnt lgkmcnt(0)")
            def fin():
                A(f"v_lshlrev_b32 v14, 2, v166"); A(f"v_add_u32 v15, {L_PART + 1536}, v14")
                A("ds_read_b32 v92, v15"); A("ds_read_b32 v94, v15 offset:256")
                A(f"v_mov_b32 v93, s{S_TAG}"); A("v_lshlrev_b32 v14, 3, v166")
                A("s_waitcnt lgkmcnt(0)")
                A("v_add_f32 v92, v92, v94")
                A("s_lshr_b32 s3, s2, 4"); A("s_lshl_b32 s3, s3, 13"); A("s_and_b32 s4, s2, 15"); A("s_lshl_b32 s4, s4, 9")
                A("s_add_u32 s3, s3, s4"); A(f"s_add_u32 s3, s3, {WS_YP}")
                A(f"buffer_store_dwordx2 v[92:93], v14, s[{SWS}:{SWS+3}], s3 offen sc1")
            self.last_arriver(2, fin, 2)
        return dict(gate_issue=st_gate_issue, key=st_key, gate_mma=st_gate_mma, up_mma=st_up_mma, h=st_h, down_mma=st_down_mma)

    def p3_operands(self):
        A = self.A
        VL16, VLANE = 165, 166
        S_RT, S_CT, S_OB, S_R = S_TMP+10, S_TMP+11, S_TMP+12, S_TMP+13
        XR, GR, VOUT = 140, 148, 149
        A("s_and_b32 s3, s2, 7"); A("s_lshl_b32 s3, s3, 1"); A("s_lshr_b32 s4, s2, 7"); A(f"s_add_u32 s{S_RT}, s3, s4")
        A("s_lshr_b32 s3, s2, 3"); A(f"s_and_b32 s{S_CT}, s3, 15")
        A(f"s_and_b32 s3, s{S_WAVE}, 3"); A(f"s_lshl_b32 s4, s{S_RT}, 2"); A(f"s_add_u32 s{S_R}, s3, s4")
        A(f"v_and_b32 v150, 31, v{VLANE}")
        A(f"s_lshl_b32 s3, s{S_R}, 5"); A("v_add_u32 v150, s3, v150")
        A(f"v_lshrrev_b32 v151, 5, v{VLANE}")
        A(f"s_lshr_b32 s4, s{S_WAVE}, 2"); A("s_lshl_b32 s4, s4, 6"); A(f"s_lshl_b32 s5, s{S_CT}, 7"); A("s_add_u32 s4, s4, s5")
        A("v_lshlrev_b32 v155, 11, v150"); A("v_add_u32 v155, s4, v155")
        A(f"v_lshl_add_u32 v{VOUT}, v151, 4, v155")
        for G in range(2): A(f"buffer_load_dwordx4 {vr(XR+4*G,4)}, v{VOUT}, s[{SX}:{SX+3}], 0 offen offset:{32*G}")
        A("v_lshlrev_b32 v155, 2, v150"); A(f"s_mov_b32 s5, {WS_G}")
        A(f"buffer_load_dword v{GR}, v155, s[{SWS}:{SWS+3}], s5 offen sc1")
        if hasattr(self, "vm"): self.vm_add("p3op", 6)

    def p3_setup(self):
        A = self.A
        VL16, VLANE = 165, 166
        S_RT, S_CT, S_OB, S_R = S_TMP+10, S_TMP+11, S_TMP+12, S_TMP+13
        VK, VS = 112, 113
        srd(A, SB, P_OUT, 2048 * 1024 * 2)
        A(f"v_bfe_u32 v114, v{VLANE}, 2, 2"); A("v_lshl_add_u32 v114, v151, 2, v114"); A("v_lshlrev_b32 v114, 7, v114")
        A(f"v_and_b32 v115, 3, v{VLANE}"); A("v_lshl_add_u32 v114, v115, 3, v114")
        A(f"v_bfe_u32 v115, v{VLANE}, 4, 1"); A("v_lshl_add_u32 v114, v115, 5, v114")
        A(f"s_lshr_b32 s4, s{S_WAVE}, 2")
        A(f"v_bfe_u32 v115, v{VLANE}, 3, 1"); A("v_xor_b32 v115, s4, v115")
        A(f"v_lshl_add_u32 v{VK}, v115, 6, v114")
        A("s_lshl_b32 s5, s4, 16"); A(f"v_add_u32 v{VK}, s5, v{VK}")
        A(f"v_xor_b32 v{VS}, 64, v{VK}")
        A(f"s_lshl_b32 s{S_OB}, s{S_R}, 16"); A("s_lshl_b32 s5, s4, 15"); A(f"s_add_u32 s{S_OB}, s{S_OB}, s5"); A(f"s_add_u32 s{S_OB}, s{S_OB}, {WS_O}")

    def p3_pre(self, nwait):
        A = self.A
        XR, T2 = 140, 80
        A(f"v_mov_b32 v120, {L_CNT + 28}"); A("ds_read_b32 v120, v120")
        A(f"s_waitcnt vmcnt({nwait}) lgkmcnt(0)")
        A(f"v_readfirstlane_b32 s{S_KEY}, v120")
        for G in (0, 2):
            A(f"v_permlane32_swap_b32 v{XR+2*G}, v{XR+2*G+2}"); A(f"v_permlane32_swap_b32 v{XR+2*G+1}, v{XR+2*G+3}")
        A(f"s_and_b32 s3, s{S_KEY}, 2047"); A(f"s_sub_u32 s{S_SEL}, 2047, s3")
        A("v_sub_f32 v115, 1.0, v148"); A("v_cvt_pk_bf16_f32 v115, v115, v115"); A("v_lshlrev_b32 v115, 16, v115")
        for G in range(4):
            for d in range(2):
                x = XR + 2*G + d; o = T2 + 4*G + 2*d
                A(f"v_lshlrev_b32 v{o}, 16, v{x}"); A(f"v_and_b32 v{o+1}, 0xffff0000, v{x}")
        for r in range(17, 32): A(f"v_mov_b32 v{r}, 0")
        for r in range(14): A(f"v_mov_b32 v{r}, 0")

    def p3(self):
        A = self.A
        A.label("L_p3")
        VL16, VLANE = 165, 166
        S_RT, S_CT, S_OB, S_R = S_TMP+10, S_TMP+11, S_TMP+12, S_TMP+13
        XR, GR, VOUT = 140, 148, 149
        VK, VS = 112, 113
        T2 = 80; YR = 96
        labn = A.newlabel("L_nomoe")
        A(f"s_lshr_b32 s3, s{S_SEL}, 5")
        A(f"s_cmp_lg_u32 s3, s{S_R}")
        A(f"s_cbranch_scc1 {labn}")
        if self.moe:
            A(f"v_and_b32 v14, 31, v{VLANE}"); A("v_lshlrev_b32 v14, 3, v14"); A("v_lshl_add_u32 v14, v151, 16, v14")
            A(f"s_lshr_b32 s4, s{S_WAVE}, 2"); A("s_lshl_b32 s4, s4, 8"); A(f"s_lshl_b32 s5, s{S_CT}, 9"); A("s_add_u32 s4, s4, s5"); A(f"s_add_u32 s6, s4, {WS_YP}")
            lab = A.newlabel("L_poll"); done = A.newlabel("L_polld")
            A(f"s_mov_b32 s96, {SPIN_MAX}")
            A.label(lab)
            A("s_mov_b32 s4, s6")
            for i in range(8):
                A(f"buffer_load_dwordx2 {vr(32+2*i,2)}, v14, s[{SWS}:{SWS+3}], s4 offen sc1")
                A("s_add_u32 s4, s4, 8192")
            A("s_waitcnt vmcnt(0)")
            A(f"v_xor_b32 v16, s{S_TAG}, v33")
            for i in range(1, 8):
                A(f"v_xor_b32 v17, s{S_TAG}, v{33+2*i}"); A("v_or_b32 v16, v16, v17")
            A("v_cmp_ne_u32 vcc, 0, v16")
            A("s_sub_u32 s96, s96, 1"); A("s_cmp_eq_u32 s96, 0"); A(f"s_cbranch_scc1 {done}")
            A("s_nop 2")
            A(f"s_cbranch_vccz {done}")
            A("s_sleep 4")
            A(f"s_branch {lab}")
            A.label(done)
            A(f"s_and_b32 s3, s{S_KEY}, 0xffff0000"); A("s_bitcmp1_b32 s3, 31"); A("s_mov_b32 s4, 0xffff0000")
            A("s_cselect_b32 s4, 0x80000000, s4"); A("s_xor_b32 s3, s3, s4")
            A(f"v_mov_b32 v30, {hex(f32bits(-LOG2E))}"); A("v_mul_f32 v30, s3, v30"); A("v_exp_f32 v30, v30"); A("s_nop 0")
            A("v_add_f32 v30, 1.0, v30"); A("v_rcp_f32 v30, v30"); A("s_nop 0")
            A("v_cvt_pk_bf16_f32 v30, v30, v30"); A("v_lshlrev_b32 v30, 16, v30")
            A("v_add_f32 v20, v32, v34")
            for i in range(2, 8): A(f"v_add_f32 v20, v20, v{32+2*i}")
            A("v_mov_b32 v21, v20"); A("s_nop 1"); A("v_permlane32_swap_b32 v20, v21"); A("s_nop 1"); A("v_add_f32 v20, v20, v21")
            A("v_cvt_pk_bf16_f32 v20, v20, v20"); A("v_lshlrev_b32 v20, 16, v20"); A("v_mul_f32 v20, v20, v30")
            A("v_cvt_pk_bf16_f32 v20, v20, v20"); A("v_lshlrev_b32 v20, 16, v20")
            A("v_lshlrev_b32 v21, 4, v151")
            for r in range(16):
                A(f"ds_bpermute_b32 v{YR+r}, v21, v20 offset:{(8*(r>>2)+(r&3))*4}")
                if r == 7: A("s_waitcnt lgkmcnt(0)")
            A(f"v_cmp_eq_u32 vcc, s{S_SEL}, v150")
            A("s_waitcnt lgkmcnt(0)")
            for r in range(16): A(f"v_cndmask_b32 v{YR+r}, 0, v{YR+r}, vcc")
            for r in range(16): A(f"v_add_f32 v{T2+r}, v{T2+r}, v{YR+r}")
            for r in (17, 20, 21, 30): A(f"v_mov_b32 v{r}, 0")
        A.label(labn)
        for r in range(16): A(f"v_mul_f32 v{T2+r}, v115, v{T2+r}")
        self.stampit(167)
        OF = [32, 48]; WF = [64, 72]
        S_RDY, S_ISS, S_ROT, S_CNT, S_FL = S_TMP, S_TMP+1, S_TMP+2, S_TMP+3, S_TMP+4
        S_BLK = [S_TMP+5, S_TMP+6]; S_SH = S_TMP + 7
        A(f"s_mov_b32 s{S_RDY}, 0"); A(f"s_mov_b32 s{S_ISS}, 0"); A(f"s_lshr_b32 s{S_ROT}, s{S_CT}, 1")
        A(f"s_lshl_b32 s{S_FL}, s{S_RT}, 6"); A(f"s_add_u32 s{S_FL}, s{S_FL}, {WS_F3}")
        A(f"v_lshlrev_b32 v119, 2, v{VLANE}")
        A(f"v_mov_b32 v118, {L_LAND + 4}")
        A(f"s_lshr_b32 s{S_SH}, s{S_WAVE}, 2"); A(f"s_lshl_b32 s{S_SH}, s{S_SH}, 3")
        def poll():
            lab = A.newlabel("L_poll"); done = A.newlabel("L_polld")
            A(f"s_mov_b32 s96, {SPIN_MAX}")
            A("s_mov_b64 exec, 0xffff")
            A.label(lab)
            A("ds_read_b32 v120, v118"); A("s_waitcnt lgkmcnt(0)")
            A("v_readfirstlane_b32 s3, v120"); A("s_nop 1")
            A(f"s_lshr_b32 s3, s3, s{S_SH}"); A(f"s_and_b32 s{S_RDY}, s3, 0xff")
            A(f"s_andn2_b32 s3, s{S_RDY}, s{S_ISS}")
            A(f"s_cbranch_scc1 {done}")
            A(f"buffer_load_dword v120, v119, s[{SWS}:{SWS+3}], s{S_FL} offen sc1")
            A("s_waitcnt vmcnt(0)")
            A(f"v_cmp_eq_u32 vcc, s{S_TAG}, v120")
            A("s_sub_u32 s96, s96, 1"); A("s_cmp_eq_u32 s96, 0")
            A("s_cselect_b32 s3, 0xffff, 0"); A("s_nop 1")
            A("s_or_b32 s3, vcc_lo, s3"); A("v_mov_b32 v120, s3"); A("ds_or_b32 v118, v120")
            A(f"s_lshr_b32 s3, s3, s{S_SH}"); A(f"s_and_b32 s{S_RDY}, s3, 0xff")
            A(f"s_andn2_b32 s3, s{S_RDY}, s{S_ISS}")
            A(f"s_cbranch_scc1 {done}")
            A(f"s_sleep {self.o.get('p3sleep', 6)}")
            A(f"s_branch {lab}")
            A.label(done)
            A("s_waitcnt lgkmcnt(0)")
            A("s_mov_b64 exec, -1")
        def issue(b):
            A(f"s_andn2_b32 s3, s{S_RDY}, s{S_ISS}")
            A("s_lshl_b32 s4, s3, 8"); A("s_or_b32 s3, s3, s4"); A(f"s_lshr_b32 s3, s3, s{S_ROT}")
            A("s_ff1_i32_b32 s3, s3"); A(f"s_add_u32 s3, s3, s{S_ROT}"); A(f"s_and_b32 s{S_BLK[b]}, s3, 7")
            A(f"s_bitset1_b32 s{S_ISS}, s{S_BLK[b]}")
            A(f"s_lshl_b32 s3, s{S_BLK[b]}, 12"); A(f"s_add_u32 s3, s3, s{S_OB}")
            for i in range(4):
                A(f"buffer_load_dwordx4 {vr(OF[b]+4*i,4)}, v{VL16}, s[{SWS}:{SWS+3}], s3 offen offset:{1024*i} sc1")
        def process(b, younger):
            A(f"s_lshl_b32 s3, s{S_BLK[b]}, 13")
            A(f"v_add_u32 v116, s3, v{VK}"); A(f"v_add_u32 v117, s3, v{VS}")
            def wread(i):
                w = WF[i & 1]
                A(f"ds_read_b64_tr_b16 {vr(w,2)}, v116 offset:{2048*i}"); A(f"ds_read_b64_tr_b16 {vr(w+2,2)}, v116 offset:{2048*i+1024}")
                A(f"ds_read_b64_tr_b16 {vr(w+4,2)}, v117 offset:{2048*i}"); A(f"ds_read_b64_tr_b16 {vr(w+6,2)}, v117 offset:{2048*i+1024}")
            wread(0)
            for i in range(4):
                if i < 3:
                    wread(i + 1); A(f"s_waitcnt vmcnt({younger+3-i}) lgkmcnt(4)")
                else: A(f"s_waitcnt vmcnt({younger}) lgkmcnt(0)")
                w = WF[i & 1]
                A(mfma32(0, w, OF[b] + 4*i, 0)); A(mfma32(16, w + 4, OF[b] + 4*i, 16))
        A(f"s_lshr_b32 s7, s{S_WAVE}, 2"); A("s_add_u32 s5, s7, 18")
        self.lds_spin_ge(L_LAND, 1, 1, "s5", 2)
        self.lds_spin_ge(L_CNT, 1, 1, "s7", 2)
        poll(); issue(0)
        for r in (14, 15, 16): A(f"v_mov_b32 v{r}, 0")
        self.stampit(167)
        A(f"s_mov_b32 s{S_CNT}, 4")
        A.raw(".p2align 6")
        A.label("L_p3loop")
        for b in range(2):
            lb = A.newlabel("L_pb"); lj = A.newlabel("L_pj")
            if b == 1:
                A(f"s_sub_u32 s{S_CNT}, s{S_CNT}, 1"); A(f"s_cmp_eq_u32 s{S_CNT}, 0"); A("s_cbranch_scc1 L_p3last")
            A(f"s_andn2_b32 s3, s{S_RDY}, s{S_ISS}"); A(f"s_cbranch_scc0 {lb}")
            issue(1 - b); process(b, 4)
            A(f"s_branch {lj}" if b == 0 else "s_branch L_p3loop")
            A.label(lb)
            process(b, 0); poll(); issue(1 - b)
            if b == 0: A.label(lj)
            else: A("s_branch L_p3loop")
        A.label("L_p3last")
        process(1, 0)
        self.stampit(167)
        A(f"s_lshl_b32 s3, s{S_WAVE}, 12"); A(f"s_add_u32 s3, s3, {L_R2}"); A(f"v_add_u32 v116, s3, v{VL16}")
        A("s_xor_b32 s3, s3, 16384"); A(f"v_add_u32 v117, s3, v{VL16}")
        A("s_barrier")
        A("s_nop 7")
        for r in range(4): A(f"ds_write_b128 v116, {vr(16+4*r,4)} offset:{1024*r}")
        A("s_waitcnt lgkmcnt(0)")
        A("s_barrier")
        for r in range(4): A(f"ds_read_b128 {vr(16+4*r,4)}, v117 offset:{1024*r}")
        for h in range(2):
            A(f"s_waitcnt lgkmcnt({2-2*h})")
            for r in range(8*h, 8*h+8): A(f"v_add_f32 v{r}, v{r}, v{16+r}")
            for r in range(8*h, 8*h+8): A(f"v_fma_f32 v{r}, v{GR}, v{r}, v{T2+r}")
            for i in range(4*h, 4*h+4): A(f"v_cvt_pk_bf16_f32 v{48+i}, v{2*i}, v{2*i+1}")
            A("s_nop 1")
            A(f"v_permlane32_swap_b32 v{48+4*h}, v{48+4*h+2}")
            A(f"v_permlane32_swap_b32 v{48+4*h+1}, v{48+4*h+3}")
            A("s_nop 1")
            A(f"buffer_store_dwordx4 {vr(48+4*h,4)}, v{VOUT}, s[{SB}:{SB+3}], 0 offen offset:{32*h} {self.o.get('outfl', '')}")
        self.stampit(167)
        self.stamp_flush(167, 114, VLANE)
        A("s_endpgm")

    def build(self):
        A = self.A
        A.label("L_code0")
        self.prologue()
        self.helper_p1()
        self.helper_p2()
        A.label("L_groupa")
        self.p1_compute()
        self.p2_compute(0)
        self.groupb_p1()
        self.p2_compute(1)
        self.att_tail()
        self.p3()
        self.fallback()
        A.label("L_end")
        A("s_endpgm")
        A.label("L_code1")
        return HEADER.format(grid=256, block=768, lds=LDS_BYTES, name=KN) + A.text() + FOOTER.format(name=KN, nvgpr=168, accum=168)


if __name__ == "__main__":
    import argparse, json
    ap = argparse.ArgumentParser()
    ap.add_argument("out"); ap.add_argument("--rot", type=int, default=0); ap.add_argument("--stamp", action="store_true")
    ap.add_argument("--nomoe", action="store_true"); ap.add_argument("--opts", default="{}")
    a = ap.parse_args()
    g = Gen(rot=a.rot, stamp=a.stamp, moe=not a.nomoe, opts=json.loads(a.opts))
    open(a.out, "w").write(g.build())
```

```python
import sys, math, struct
from asmlib import *

KN = "gated_mix__softmax_full_mha__moe_arch_mod__prompt_kernel"
def f32bits(x): return struct.unpack("<I", struct.pack("<f", x))[0]
QSCALE = math.log2(math.e) / math.sqrt(32.0)
LOG2E = math.log2(math.e)

WS_KV = 0
WS_O  = 8 << 20
WS_G  = 12 << 20
WS_GU = WS_G + 0x4000
WS_YP = WS_G + 0x40000
WS_F1 = WS_G + 0x60000
WS_F3 = WS_F1 + 0x800
WS_KEYS = WS_F1 + 0x1000
WS_FA = WS_F1 + 0x2000
WS_KVA = 20 << 20
WS_QA = 28 << 20
WS_QB = 30 << 20
WS_ST = 16 << 20
DBG_C0, DBG_KEY, DBG_C1 = 0, 128, 132

G_STAGE = 40960; G_NSLOT = 3
L_WR = 3 * 40960
KV_SLOT = 16384; KV_NSLOT = 8
L_R2 = 131072
L_R1 = L_R2 + 24576
L_CNT = L_R1
L_LAND = L_R1 + 32
L_PROG = L_R1 + 256
L_PART = L_R1 + 2560
L_H = L_R1 + 4608
L_TAG = L_R1 + 6144
LDS_BYTES = 163840

SPIN_MAX = 1 << 16
OPS_AT = 10

P_X, P_W, P_WO, P_BX, P_WR, P_WG, P_WU, P_WD, P_GW, P_OUT, P_DBG, P_WS = [16 + 2 * i for i in range(12)]
SX, SW, SWS, SDBG, SA, SB = 40, 44, 48, 52, 56, 60
S_WAVE, S_RB, S_HP, S_U, S_T0 = 64, 65, 66, 67, 68
S_SEL, S_KEY = 70, 71
S_XCC = 73
S_TAG = 15
S_STI = 72
S_TMP = 74


class Gen:
    def __init__(self, rot=0, stamp=False, moe=True, stop_after=3, opts=None):
        self.A = Asm()
        self.rot = rot; self.stamp = stamp; self.moe = moe; self.stop_after = stop_after
        self.o = opts or {}

    def stampit(self, vreg):
        if not self.stamp: return
        A = self.A
        if self.o.get("rt", 0):
            A("s_memrealtime s[98:99]"); A("s_waitcnt lgkmcnt(0)"); A("s_sub_u32 s98, s98, s100"); A("s_add_u32 s98, s98, 1")
        else:
            A("s_memtime s[98:99]")
            A("s_waitcnt lgkmcnt(0)")
            A(f"s_sub_u32 s98, s98, s{S_T0}")
        A(f"s_mov_b32 m0, s{S_STI}")
        A("s_nop 1")
        A(f"v_writelane_b32 v{vreg}, s98, m0")
        A(f"s_add_u32 s{S_STI}, s{S_STI}, 1")

    def stamp_flush(self, vreg, vtmp, vlane):
        if not self.stamp: return
        A = self.A
        A("s_memrealtime s[98:99]"); A("s_waitcnt lgkmcnt(0)")
        A(f"v_writelane_b32 v{vreg}, s100, 62"); A(f"v_writelane_b32 v{vreg}, s98, 63")
        A(f"s_lshl_b32 s98, s2, 12")
        A(f"s_lshl_b32 s99, s{S_WAVE}, 8")
        A(f"s_add_u32 s98, s98, s99")
        A(f"s_add_u32 s98, s98, {WS_ST}")
        A(f"v_lshlrev_b32 v{vtmp}, 2, v{vlane}")
        A(f"buffer_store_dword v{vreg}, v{vtmp}, s[{SWS}:{SWS+3}], s98 offen")
        if self.o.get("dbgwg") is not None:
            lab = A.newlabel("L_dbg")
            A(f"s_lshl_b32 s98, s2, 4"); A(f"s_add_u32 s98, s98, s{S_WAVE}"); A(f"s_cmp_lg_u32 s98, {self.o['dbgwg']*16}"); A(f"s_cbranch_scc1 {lab}")
            A("s_mov_b64 exec, 0x7fff")
            A(f"buffer_store_dword v{vreg}, v{vtmp}, s[{SDBG}:{SDBG+3}], 0 offen offset:4")
            A.label(lab)

    def poll(self, srd_, voff, soff, nlanes_mask, want, vtmp, cmp="eq"):
        A = self.A
        lab = A.newlabel("L_poll"); done = A.newlabel("L_polld")
        A(f"s_mov_b32 s96, {SPIN_MAX}")
        A(f"s_mov_b64 exec, {hex(nlanes_mask)}")
        A.label(lab)
        A(f"buffer_load_dword v{vtmp}, v{voff}, s[{srd_}:{srd_+3}], {soff} offen sc1")
        A("s_waitcnt vmcnt(0)")
        A(f"v_cmp_ne_u32 vcc, {want}, v{vtmp}")
        A("s_sub_u32 s96, s96, 1")
        A("s_cmp_eq_u32 s96, 0")
        A(f"s_cbranch_scc1 {done}")
        A("s_nop 2")
        A(f"s_cbranch_vccz {done}")
        A("s_sleep 1")
        A(f"s_branch {lab}")
        A.label(done)
        A("s_mov_b64 exec, -1")

    def prologue(self):
        A = self.A
        A("s_cmp_ge_u32 s2, 256")
        A("s_cbranch_scc1 L_end")
        A("s_load_dwordx16 s[16:31], s[0:1], 0")
        A("s_load_dwordx8 s[32:39], s[0:1], 64")
        if self.stamp:
            A(f"s_memtime s[{S_T0}:{S_T0+1}]")
            A(f"s_mov_b32 s{S_STI}, 0")
            A("s_memrealtime s[100:101]")
        A("v_lshrrev_b32 v1, 6, v0")
        A("v_and_b32 v0, 63, v0")
        A(f"v_readfirstlane_b32 s{S_WAVE}, v1")
        A("s_and_b32 s3, s2, 7")
        A("s_lshr_b32 s4, s2, 3")
        A("s_and_b32 s5, s3, 1")
        A("s_lshl_b32 s5, s5, 3")
        A("s_and_b32 s6, s4, 7")
        A(f"s_add_u32 s{S_RB}, s5, s6")
        A("s_lshr_b32 s5, s3, 1")
        A("s_lshl_b32 s5, s5, 2")
        A("s_lshr_b32 s6, s4, 3")
        A(f"s_add_u32 s{S_HP}, s5, s6")
        A("s_waitcnt lgkmcnt(0)")
        srd(A, SX, P_X, 2048 * 1024 * 2)
        srd(A, SW, P_W, 1024 * 3072 * 2)
        srd(A, SWS, P_WS, 32 << 20)
        srd(A, SDBG, P_DBG, 256)
        A(f"s_cmp_lt_u32 s{S_WAVE}, 4")
        A("s_cbranch_scc1 L_groupa")
        A(f"s_cmp_lt_u32 s{S_WAVE}, 8")
        A("s_cbranch_scc1 L_groupb")

    def p1_compute(self):
        A = self.A
        FA, FB, VX, VW = 96, 116, 136, 140
        VL16 = 165
        VLANE = 166
        self.VL16, self.VLANE = VL16, VLANE
        A(f"v_mov_b32 v{VLANE}, v0")
        A(f"v_lshlrev_b32 v{VL16}, 4, v0")
        if self.stamp: A("v_mov_b32 v167, 0")
        A(f"s_and_b32 s{S_U}, s{S_WAVE}, 1")
        lab = A.newlabel("L_tag")
        A(f"s_lshl_b32 s3, s2, 4"); A(f"s_add_u32 s3, s3, s{S_WAVE}"); A("s_cmp_lg_u32 s3, 1"); A(f"s_cbranch_scc1 {lab}")
        A("s_memrealtime s[4:5]"); A("s_waitcnt lgkmcnt(0)")
        A("s_and_b32 s4, s4, 0x7ffffff0"); A("s_or_b32 s4, s4, 0x80000000")
        A("v_mov_b32 v141, 0"); A("v_mov_b32 v142, s4")
        A("s_mov_b64 exec, 1")
        A(f"buffer_store_dword v142, v141, s[{SDBG}:{SDBG+3}], 0 offen sc1")
        A("s_mov_b64 exec, -1")
        A.label(lab)
        self.gemm16()
        A("s_waitcnt lgkmcnt(0)")
        A(f"s_lshl_b32 s4, s{S_WAVE}, 11"); A(f"s_add_u32 s4, s4, {L_R2}"); A(f"v_add_u32 v143, s4, v{VL16}")
        A("s_barrier")
        A("ds_read_b128 v[128:131], v143"); A("ds_read_b128 v[132:135], v143 offset:1024")

    def gemm16(self):
        A = self.A
        VL16 = 165
        X = [96, 112]; W = 128; VX = [152, 153]; VW = 154
        acc = lambda seg, rt, ch: 4 * (seg * 8 + rt * 2 + ch)
        A("v_and_b32 v155, 15, v0")
        A("v_lshrrev_b32 v156, 4, v0")
        A("v_lshrrev_b32 v157, 1, v155")
        A("v_xor_b32 v157, v157, v156")
        A("v_lshlrev_b32 v157, 4, v157")
        A("v_lshl_add_u32 v157, v155, 7, v157")
        A(f"s_lshr_b32 s3, s{S_WAVE}, 1"); A("s_lshl_b32 s3, s3, 13")
        A(f"v_add_u32 v{VX[0]}, s3, v157")
        A(f"v_xor_b32 v{VX[1]}, 64, v{VX[0]}")
        A("v_lshrrev_b32 v157, 2, v155")
        A("v_lshl_add_u32 v157, v156, 3, v157")
        A("v_lshlrev_b32 v157, 7, v157")
        A("v_and_b32 v158, 3, v0"); A("v_lshl_add_u32 v157, v158, 3, v157")
        A("v_bfe_u32 v158, v0, 3, 1"); A("v_lshl_add_u32 v157, v158, 5, v157")
        A("v_bfe_u32 v158, v0, 4, 1"); A(f"v_xor_b32 v158, s{S_U}, v158")
        A(f"v_lshl_add_u32 v{VW}, v158, 6, v157")
        A(f"v_xor_b32 v{VW+1}, 32, v{VW}")
        self.att_consts()
        for i in range(96): A(f"v_mov_b32 v{i}, 0")
        def rx(kk, rt): return (("x", kk, rt), f"ds_read_b128 {vr(X[kk]+4*rt,4)}, v{VX[kk]} offset:{2048*rt}")
        def rw(kk, j, r2):
            return (("w", j, r2), f"ds_read_b64_tr_b16 {vr(W+4*j+2*r2,2)}, v{VW+(j&1)} offset:{16384+(j>>1)*8192+kk*4096+r2*512}")
        def mm(kk, j, rt):
            seg, ch = j >> 1, j & 1; d = acc(seg, rt, ch)
            return mfma16(d, W+4*j, X[kk]+4*rt, d) if seg < 2 else mfma16(d, X[kk]+4*rt, W+4*j, d)
        S_CNT, S_SLOT, S_D = S_TMP, S_TMP+1, S_TMP+2
        A(f"s_mov_b32 s{S_CNT}, 16"); A(f"s_mov_b32 s{S_SLOT}, 0")
        A(f"s_mov_b32 s{S_D+1}, {-(G_NSLOT-1)*G_STAGE & 0xffffffff}"); A(f"s_mov_b32 s{S_D+2}, {G_STAGE}")
        va = lambda r: (None, f"v_add_u32 v{r}, s{S_D}, v{r}")
        sa = lambda t: (None, t)
        gaps0 = {0: [rw(0,5,0)], 1: [rw(0,5,1)], 2: [rx(1,0)], 3: [sa(f"s_add_u32 s{S_SLOT}, s{S_SLOT}, 1")],
                 6: [rx(1,1)], 7: [sa(f"s_cmp_eq_u32 s{S_SLOT}, {G_NSLOT}")], 10: [rx(1,2)],
                 11: [sa(f"s_cselect_b32 s{S_D}, s{S_D+1}, s{S_D+2}")], 14: [rx(1,3)],
                 15: [sa(f"s_cselect_b32 s{S_SLOT}, 0, s{S_SLOT}")], 18: [va(VX[0])], 19: [sa(f"s_sub_u32 s{S_CNT}, s{S_CNT}, 1")]}
        for j in range(5): gaps0[4*(j+1)] = [rw(1,j,0)]; gaps0[4*(j+1)+1] = [rw(1,j,1)]
        gaps1 = {0: [rw(1,5,0)], 1: [rw(1,5,1)], 2: [va(VX[1])], 3: [va(VW)], 4: [va(VW+1)], 7: ["BAR"],
                 8: [rw(0,0,0)], 9: [rw(0,0,1)], 10: [rx(0,0)], 11: [rx(0,1)], 12: [rx(0,2)], 13: [rx(0,3)], 14: [rw(0,1,0)], 15: [rw(0,1,1)],
                 16: [rw(0,2,0)], 17: [rw(0,2,1)], 18: [rw(0,3,0)], 19: [rw(0,3,1)], 20: [rw(0,4,0)], 21: [rw(0,4,1)],
                 22: [sa(f"s_cmp_lg_u32 s{S_CNT}, 0")]}
        tail_ops = [op for k in sorted(gaps1) if k >= 8 for op in gaps1[k] if op[0]]
        self.stampit(167)
        A("s_barrier")
        self.stampit(167)
        q = []
        for op in tail_ops: A(op[1]); q.append(op[0])
        A.raw(".p2align 6")
        A.label("L_g1loop")
        for kk, gaps in ((0, gaps0), (1, gaps1)):
            for n in range(24):
                j, rt = n >> 2, n & 3
                need = [("w", j, 0), ("w", j, 1), ("x", kk, rt)]
                idx = [i for i, t in enumerate(q) if t in need]
                if idx:
                    A(f"s_waitcnt lgkmcnt({len(q) - 1 - idx[-1]})"); q = q[idx[-1] + 1:]
                A(mm(kk, j, rt))
                for op in gaps.get(n, []):
                    if op == "BAR":
                        A("s_waitcnt lgkmcnt(0)"); q = []
                        if self.o.get("st1", 0): self.stampit(167)
                        A("s_barrier")
                        if self.o.get("st1", 0): self.stampit(167)
                    else:
                        A(op[1])
                        if op[0]: q.append(op[0])
        assert q == [op[0] for op in tail_ops]
        A("s_cbranch_scc1 L_g1loop")
        A(f"v_mov_b32 v156, {L_TAG}"); A("ds_read_b32 v156, v156")
        A(f"s_getreg_b32 s{S_XCC}, hwreg(HW_REG_XCC_ID, 0, 4)")
        self.stampit(167)
        A(f"s_lshr_b32 s4, s{S_WAVE}, 1"); A("s_lshl_b32 s4, s4, 13")
        A(f"s_lshl_b32 s3, s{S_U}, 14"); A("s_add_u32 s3, s3, s4")
        A(f"s_lshl_b32 s5, s{S_HP}, 19"); A(f"s_lshl_b32 s6, s{S_RB}, 15"); A("s_add_u32 s5, s5, s6")
        A("s_lshr_b32 s8, s5, 2"); A("s_add_u32 s5, s5, s3")
        A(f"s_add_u32 s5, s5, {WS_KVA}"); A("s_add_u32 s6, s5, 4096")
        A("s_lshr_b32 s9, s4, 1"); A("s_add_u32 s8, s8, s9"); A(f"s_add_u32 s8, s8, {WS_QA}")
        A(f"s_xor_b32 s7, s{S_RB}, s{S_U}"); A("s_bitcmp1_b32 s7, 0")
        A(f"s_cselect_b32 s7, {7*16384}, 0"); A("s_cselect_b32 s8, s8, 0x7f000000"); A("s_cselect_b32 s10, 8192, 0")
        A("s_add_u32 s7, s7, s4")
        A("s_add_u32 s9, s9, s10"); A(f"s_add_u32 s9, s9, {L_R2}")
        A(f"s_mov_b32 s3, {f32bits(QSCALE)}")
        def pack_qk(seg, t, dst):
            for h in range(2):
                for ch in range(2):
                    b = acc(seg, 2*t + h, ch)
                    A(f"v_cvt_pk_bf16_f32 v{dst+4*h+2*ch}, v{b}, v{b+1}"); A(f"v_cvt_pk_bf16_f32 v{dst+4*h+2*ch+1}, v{b+2}, v{b+3}")
        def swap_qk(dst):
            for i in range(4): A(f"v_permlane16_swap_b32 v{dst+i}, v{dst+4+i}")
        for t in range(2):
            for i in range(16*t, 16*t+16, 2): A(f"v_pk_mul_f32 v[{i}:{i+1}], v[{i}:{i+1}], s[2:3] op_sel:[0,1] op_sel_hi:[1,1]")
            if t == 0:
                A("s_waitcnt lgkmcnt(0)")
                A(f"v_readfirstlane_b32 s{S_TAG}, v156")
                A(f"v_add_u32 v141, s7, v{VL16}"); A(f"v_add_u32 v142, s9, v{VL16}")
            pack_qk(0, t, 128 + 16*t)
        for t in range(2):
            swap_qk(128 + 16*t)
        for t in range(2):
            for f in range(2):
                A(f"buffer_store_dwordx4 {vr(128+16*t+4*f,4)}, v{VL16}, s[{SWS}:{SWS+3}], s8 offen offset:{2048*t+1024*f}")
        for t in range(2):
            kd = 96 + 16*t; vd = kd + 8
            pack_qk(1, t, kd)
            for h in range(2):
                for ch in range(2):
                    b = acc(2, 2*t + h, ch)
                    A(f"v_cvt_pk_bf16_f32 v{vd+4*h+2*ch}, v{b}, v{b+1}"); A(f"v_cvt_pk_bf16_f32 v{vd+4*h+2*ch+1}, v{b+2}, v{b+3}")
            swap_qk(kd)
            for h in range(2):
                for d in range(2): A(f"v_permlane16_swap_b32 v{vd+4*h+d}, v{vd+4*h+2+d}")
            A("s_nop 0")
            for h in range(2):
                for d in range(2): A(f"v_permlane32_swap_b32 v{vd+4*h+d}, v{vd+4*h+2+d}")
            for f in range(4):
                A(f"buffer_store_dwordx4 {vr(kd+4*f,4)}, v{VL16}, s[{SWS}:{SWS+3}], s{5+t} offen offset:{1024*f}")
        for t in range(2):
            for f in range(4): A(f"ds_write_b128 v141, {vr(96+16*t+4*f,4)} offset:{4096*t+1024*f}")
        for t in range(2):
            for f in range(2): A(f"ds_write_b128 v142, {vr(128+16*t+4*f,4)} offset:{2048*t+1024*f}")
        A(f"s_lshl_b32 s3, s{S_HP}, 4"); A(f"s_add_u32 s3, s3, s{S_RB}"); A("s_lshl_b32 s3, s3, 5"); A(f"s_add_u32 s3, s3, s{S_WAVE}")
        A("s_lshl_b32 s3, s3, 2"); A(f"s_add_u32 s{S_TMP+17}, s3, {WS_FA}")
        A(f"s_or_b32 s{S_XCC}, s{S_XCC}, s{S_TAG}")
        A("v_mov_b32 v156, 0"); A(f"v_mov_b32 v157, s{S_XCC}")
        A("s_waitcnt vmcnt(8)")
        A("s_mov_b64 exec, 1")
        A(f"buffer_store_dword v157, v156, s[{SWS}:{SWS+3}], s{S_TMP+17} offen offset:16")
        A("s_mov_b64 exec, -1")

    def groupb_p1(self):
        A = self.A
        VL16, VLANE = 165, 166
        A.label("L_groupb")
        A(f"v_mov_b32 v{VLANE}, v0")
        A(f"v_lshlrev_b32 v{VL16}, 4, v0")
        if self.stamp: A("v_mov_b32 v167, 0")
        A(f"s_and_b32 s{S_U}, s{S_WAVE}, 1")
        if self.o.get("codepf", 1):
            lab = A.newlabel("L_cpf")
            A(f"s_cmp_lg_u32 s{S_WAVE}, 4"); A(f"s_cbranch_scc1 {lab}")
            A("s_getpc_b64 s[6:7]")
            A.label("L_cpf_pc")
            A("s_sub_u32 s6, s6, L_cpf_pc-L_code0"); A("s_subb_u32 s7, s7, 0")
            A("s_lshr_b32 s4, s2, 3")
            A("v_lshl_add_u32 v1, v0, 5, s4"); A("v_lshlrev_b32 v1, 7, v1")
            A("v_cmp_gt_u32 vcc, L_code1-L_code0, v1")
            A("s_and_saveexec_b64 s[8:9], vcc")
            A("global_load_dword v2, v1, s[6:7]")
            A("s_mov_b64 exec, -1")
            A.label(lab)
        self.att_consts()
        A(f"s_and_b32 s4, s{S_WAVE}, 3"); A("s_lshl_b32 s4, s4, 11"); A(f"s_add_u32 s4, s4, {L_R2 + 16384}"); A(f"v_add_u32 v142, s4, v{VL16}")
        self.stampit(167); self.stampit(167); self.stampit(167)
        for i in range(18): A("s_barrier")
        self.lds_spin_ge(L_LAND + 8, 1, 1, 1, 1)
        A("ds_read_b128 v[128:131], v142"); A("ds_read_b128 v[132:135], v142 offset:1024")

    R = dict(S=[0, 16], O=32, NM=48, P=[64, 72], K=80, V=[88, 96, 104, 112], L=120, ONES=124, Q=128,
             IDX=162, VA=137, VBASE=165, VT=139, VLA=163, VPA=164, VST=154, T=156)

    def att_consts(self):
        A = self.A; R = self.R; VL16, VLANE = 165, 166
        ONES, IDX, T = R["ONES"], R["IDX"], R["T"]
        A(f"v_mov_b32 v{R['VLA']}, {L_LAND}")
        A(f"s_lshl_b32 s4, s{S_WAVE}, 8"); A(f"s_add_u32 s4, s4, {L_PROG}")
        A(f"v_lshl_add_u32 v{R['VPA']}, v{VLANE}, 2, s4")
        A(f"v_and_b32 v{T}, 1, v{VLANE}")
        A(f"v_mov_b32 v{T+1}, 0x44444444"); A(f"v_mov_b32 v{T+2}, 0xeeeeeeee")
        A(f"v_cmp_eq_u32 vcc, 0, v{T}"); A("s_nop 1")
        A(f"v_cndmask_b32 v{IDX}, v{T+2}, v{T+1}, vcc")
        A(f"v_and_b32 v{T}, 2, v{VLANE}"); A(f"v_bfe_u32 v{T+1}, v{VLANE}, 2, 1"); A(f"v_mov_b32 v{T+2}, 0x3f803f80")
        A(f"v_cmp_eq_u32 vcc, 0, v{T}"); A("s_nop 1")
        A(f"v_cndmask_b32 v{T+4}, 0, v{T+2}, vcc")
        A(f"v_cmp_eq_u32 vcc, 0, v{T+1}"); A("s_nop 1")
        A(f"v_cndmask_b32 v{T+5}, 0, v{T+4}, vcc")

    def p2_compute(self, grp):
        A = self.A; R = self.R; VL16, VLANE = 165, 166
        S, O, NM, P, K, V, L, ONES, Q = [R[k] for k in "S O NM P K V L ONES Q".split()]
        IDX, VA, VBASE, VT, VLA, VPA, VST, T = [R[k] for k in "IDX VA VBASE VT VLA VPA VST T".split()]
        G = "AB"[grp]
        def rdK(kt, f): return f"ds_read_b128 {vr(K+4*f,4)}, v{VA} offset:{kt*4096+f*1024}"
        def rdV(t, kt, f): return f"ds_read_b128 {vr(V[t&3]+4*f,4)}, v{VA} offset:{kt*4096+2048+f*1024}"
        A(f"v_mov_b32 v{VA}, v{VL16}")
        A(rdK(0,0)); A(rdK(0,1))
        A(f"s_and_b32 s{S_U}, s{S_RB}, 1")
        if grp == 1: self.read_tag(T)
        else:
            A(f"v_mov_b32 v{T}, 0"); A(f"v_mov_b32 v{T+1}, s{S_XCC}")
            A("s_waitcnt vmcnt(1)")
            A("s_mov_b64 exec, 1")
            A(f"buffer_store_dword v{T+1}, v{T}, s[{SWS}:{SWS+3}], s{S_TMP+17} offen")
            A("s_mov_b64 exec, -1")
            A("s_waitcnt lgkmcnt(0)")
        self.stampit(167)
        A(rdV(0,0,0)); A(rdV(0,0,1)); A(rdV(1,1,0)); A(rdV(1,1,1))
        A(mfma32(S[0], K, Q, None)); A(mfma32(S[0], K+4, Q+4, S[0]))
        A(f"v_mov_b32 v{ONES}, v{T+5}"); A(f"v_mov_b32 v{ONES+1}, v{T+5}")
        A(f"v_sub_u32 v{ONES+2}, v{T+4}, v{T+5}"); A(f"v_sub_u32 v{ONES+3}, v{T+4}, v{T+5}")
        for i in range(16): A(f"v_mov_b32 v{O+i}, 0")
        for i in range(4): A(f"v_mov_b32 v{L+i}, 0")
        A("v_mov_b32 v149, 0")
        S_SL, S_NEED = S_TMP+1, S_TMP+5
        A(f"s_mov_b32 s{S_SL}, 0"); A(f"s_mov_b32 s{S_TMP+20}, 0"); A(f"s_mov_b32 s{S_NEED}, 0")
        self.rowmax_to_nm()
        A("s_nop 1")
        A(mfma32(S[0], K, Q, NM)); A(mfma32(S[0], K+4, Q+4, S[0]))
        A(rdK(1,0)); A(rdK(1,1))
        A("s_nop 7")
        hi, lo = self.o.get("prioA", [2, 0]) if grp == 0 else self.o.get("prioB", [1, 1])
        A(f"s_setprio {hi}")
        A("s_waitcnt lgkmcnt(0)")
        A("s_nop 2")

        def unit(t, kt, do_qk=True, do_pv=True, last=False):
            s = S[t & 1]; p = P[t & 1]; sn = S[(t + 1) & 1]; pp = P[(t - 1) & 1]; vb = V[(t - 1) & 3]
            e = lambda i: f"v_exp_f32 v{s+i}, v{s+i}"
            c = lambda i: f"v_cvt_pk_bf16_f32 v{p+i}, v{s+2*i}, v{s+2*i+1}"
            M = [mfma32(sn, K, Q, NM), mfma32(sn, K+4, Q+4, sn), mfma32(O, vb, pp, O), mfma32(O, vb+4, pp+4, O),
                 f"v_smfmac_f32_16x16x64_bf16 {vr(L,4)}, {vr(ONES,4)}, {vr(pp,8)}, v{IDX}"]
            rd = [None, rdK(kt,0), rdK(kt,1), rdV(t+2,kt,0), rdV(t+2,kt,1)] if kt is not None else [None]*5
            g = [[e(0), e(1), e(2)], [c(0), e(3), e(4), e(5)], [c(1), e(6), e(7), c(2), e(8)],
                 [c(3), e(9), e(10), e(11), c(4)], [e(12), e(13), c(5), e(14), e(15), c(6), c(7)]]
            for i in range(5):
                if (do_qk if i < 2 else do_pv): A(M[i])
                if i == 0 and last:
                    if lo != hi: A(f"s_setprio {lo}")
                    A(f"ds_read_b32 v{VT}, v{VLA}")
                if rd[i]: A(rd[i])
                if i == 4 and last:
                    A(f"s_add_u32 s{S_SL}, s{S_SL}, {KV_SLOT}"); A(f"s_and_b32 s{S_SL}, s{S_SL}, {KV_NSLOT*KV_SLOT-1}")
                    A(f"s_add_u32 s{S_NEED}, s{S_NEED}, 1")
                for x in g[i]: A(x)
            if kt is not None and not last: A("s_waitcnt lgkmcnt(2)")
        def handshake(tag):
            A(f"v_add_u32 v{VA}, s{S_SL}, v{VBASE}")
            A(f"v_mov_b32 v{VST}, s{S_NEED}")
            A("s_waitcnt lgkmcnt(0)")
            if self.o.get("st2", 0): self.stampit(167)
            A(f"v_readfirstlane_b32 s3, v{VT}")
            A(f"ds_write_b32 v{VPA}, v{VST}")
            A(f"s_cmp_ge_u32 s3, s{S_NEED}")
            A(f"s_cbranch_scc0 L_hs_slow{G}{tag}")
            A.label(f"L_hs_back{G}{tag}")
            if lo != hi: A(f"s_setprio {hi}")
            if self.o.get("st2", 0): self.stampit(167)
        unit(0, 2, do_pv=False); unit(1, 3); unit(2, None, last=True)
        handshake(0)
        A(rdK(0,0)); A(rdK(0,1)); A(rdV(4,0,0)); A(rdV(4,0,1)); A("s_waitcnt lgkmcnt(2)")
        unit(3, 1); unit(4, 2); unit(5, 3, last=True)
        handshake(1)
        A.raw(".p2align 6")
        A.label(f"L_attloop{G}")
        unit(6, 0); unit(7, 1); unit(8, 2); unit(9, 3, last=True)
        handshake(2)
        A(f"s_cmp_eq_u32 s{S_NEED}, {OPS_AT}")
        A(f"s_cbranch_scc1 L_ops{G}")
        A(f"s_cmp_lt_u32 s{S_NEED}, 16")
        A(f"s_cbranch_scc1 L_attloop{G}")
        unit(62, None); unit(63, None, do_qk=False)
        A("s_nop 1")
        A(mfma32(O, V[3], P[1], O)); A(mfma32(O, V[3]+4, P[1]+4, O))
        A(f"v_smfmac_f32_16x16x64_bf16 {vr(L,4)}, {vr(ONES,4)}, {vr(P[1],8)}, v{IDX}")
        if grp == 0: A("s_branch L_att_tail")

    def att_tail(self):
        A = self.A; R = self.R; VL16, VLANE = 165, 166
        O, P, L, T = R["O"], R["P"], R["L"], R["T"]
        A.label("L_att_tail")
        A("s_setprio 0")
        self.stampit(167)
        A(f"s_lshr_b32 s4, s{S_WAVE}, 2"); A(f"s_xor_b32 s{S_TMP+15}, s{S_RB}, s4")
        A(f"s_lshl_b32 s3, s{S_TMP+15}, 2"); A(f"s_and_b32 s4, s{S_WAVE}, 3"); A("s_add_u32 s3, s3, s4"); A("s_lshl_b32 s3, s3, 16")
        A(f"s_lshl_b32 s4, s{S_HP}, 1"); A(f"s_add_u32 s{S_TMP+16}, s4, s{S_U}"); A(f"s_lshl_b32 s4, s{S_TMP+16}, 11")
        A("s_add_u32 s3, s3, s4"); A(f"s_add_u32 s{S_TMP+14}, s3, {WS_O}")
        A("s_nop 7")
        A.label("L_att_fin")
        A(f"v_add_f32 v{L}, v{L}, v{L+1}")
        A(f"v_mov_b32 v{T}, 0x53800000")
        A(f"v_cmp_nlt_f32 vcc, v{L}, v{T}")
        A(f"v_rcp_f32 v{L+2}, v{L}")
        A("s_nop 3")
        A("s_cbranch_vccnz L_fallback")
        A.label("L_att_ok")
        for h in range(2):
            for i in range(8*h, 8*h+8): A(f"v_mul_f32 v{O+i}, v{L+2}, v{O+i}")
            for i in range(4*h, 4*h+4): A(f"v_cvt_pk_bf16_f32 v{P[0]+i}, v{O+2*i}, v{O+2*i+1}")
            A(f"buffer_store_dwordx4 {vr(P[0]+4*h,4)}, v{VL16}, s[{SWS}:{SWS+3}], s{S_TMP+14} offen offset:{1024*h} sc1")
        self.p3_setup()
        self.p3_pre(2)
        A("s_waitcnt vmcnt(0)")
        self.stampit(167)
        def c():
            A(f"s_lshl_b32 s3, s{S_TMP+15}, 5"); A(f"s_add_u32 s3, s3, s{S_TMP+16}"); A("s_lshl_b32 s3, s3, 2"); A(f"s_add_u32 s3, s3, {WS_F3}")
        self.last_arriver("grp", lambda: self.set_flag(c), 4)

    def read_tag(self, v, wait=False):
        A = self.A
        A(f"v_mov_b32 v{v}, {L_TAG}"); A(f"ds_read_b32 v{v}, v{v}")
        A(f"s_getreg_b32 s{S_XCC}, hwreg(HW_REG_XCC_ID, 0, 4)")
        A("s_waitcnt lgkmcnt(0)")
        A(f"v_readfirstlane_b32 s{S_TAG}, v{v}")
        A("s_nop 1")
        A(f"s_or_b32 s{S_XCC}, s{S_XCC}, s{S_TAG}")

    def rowmax_to_nm(self):
        A = self.A; R = self.R
        s, NM, t = R["S"][0], R["NM"], R["T"]
        A(f"v_max3_f32 v{t}, v{s}, v{s+1}, v{s+2}")
        for i in range(3, 15, 2): A(f"v_max3_f32 v{t}, v{t}, v{s+i}, v{s+i+1}")
        A(f"v_max_f32 v{t}, v{t}, v{s+15}")
        A(f"v_mov_b32 v{t+1}, v{t}")
        A("s_nop 1")
        A(f"v_permlane32_swap_b32 v{t}, v{t+1}")
        A("s_nop 1")
        A(f"v_max_f32 v{t}, v{t}, v{t+1}")
        for i in range(16): A(f"v_sub_f32 v{NM+i}, 0, v{t}")

    def fallback(self):
        A = self.A; R = self.R; VL16, VLANE = 165, 166
        S, O, NM, P, K, V, L, ONES, Q, IDX, T = [R[k] for k in "S O NM P K V L ONES Q IDX T".split()]
        S_NEED = S_TMP + 5
        for G in "AB":
            A.label(f"L_ops{G}")
            self.p3_operands()
            A(f"s_branch L_attloop{G}")
            for tag in range(3):
                A.label(f"L_hs_slow{G}{tag}")
                if self.stamp: A("s_memtime s[10:11]")
                A(f"s_mov_b32 s96, {SPIN_MAX*16}")
                A.label(f"L_hs_spin{G}{tag}")
                A("s_sleep 1")
                A(f"ds_read_b32 v{R['VT']}, v{R['VLA']}")
                A("s_waitcnt lgkmcnt(0)")
                A(f"v_readfirstlane_b32 s3, v{R['VT']}")
                A("s_sub_u32 s96, s96, 1"); A("s_cmp_eq_u32 s96, 0"); A(f"s_cbranch_scc1 L_hs_out{G}{tag}")
                A(f"s_cmp_ge_u32 s3, s{S_NEED}")
                A(f"s_cbranch_scc0 L_hs_spin{G}{tag}")
                A.label(f"L_hs_out{G}{tag}")
                if self.stamp:
                    A("s_memtime s[12:13]"); A("s_waitcnt lgkmcnt(0)"); A("s_sub_u32 s12, s12, s10")
                    A(f"s_add_u32 s13, s{S_NEED}, 40"); A("s_mov_b32 m0, s13"); A("s_nop 1"); A("v_writelane_b32 v167, s12, m0")
                A(f"s_branch L_hs_back{G}{tag}")
        A.label("L_fallback")
        A(f"s_cmp_eq_u32 s{S_TMP+20}, 1")
        A("s_cbranch_scc1 L_att_ok")
        A(f"s_mov_b32 s{S_TMP+20}, 1")
        S_B, S_I, S_O = S_TMP+2, S_TMP+3, S_TMP+4
        A(f"s_lshl_b32 s5, s{S_HP}, 6"); A(f"s_add_u32 s5, s5, {WS_F1}")
        A(f"v_lshlrev_b32 v{T}, 2, v{VLANE}")
        self.poll_val(SWS, T, "s5", 0xffff, f"s{S_TAG}", T + 1)
        A(f"s_lshl_b32 s{S_B}, s{S_HP}, 19"); A(f"s_lshl_b32 s3, s{S_U}, 14"); A(f"s_add_u32 s{S_B}, s{S_B}, s3")
        def toff():
            A(f"s_lshr_b32 s3, s{S_I}, 2"); A("s_lshl_b32 s3, s3, 15"); A(f"s_and_b32 s4, s{S_I}, 3"); A("s_lshl_b32 s4, s4, 12")
            A("s_add_u32 s3, s3, s4"); A(f"s_add_u32 s{S_O}, s3, s{S_B}")
        MX = T + 3; s = S[0]; p = P[0]
        A(f"v_mov_b32 v{MX}, 0xff800000")
        A(f"s_mov_b32 s{S_I}, 0")
        A.label("L_fb1")
        toff()
        A(f"buffer_load_dwordx4 {vr(K,4)}, v{VL16}, s[{SWS}:{SWS+3}], s{S_O} offen sc1")
        A(f"buffer_load_dwordx4 {vr(K+4,4)}, v{VL16}, s[{SWS}:{SWS+3}], s{S_O} offen offset:1024 sc1")
        A("s_waitcnt vmcnt(0)")
        A(mfma32(s, K, Q, None)); A(mfma32(s, K+4, Q+4, s))
        A("s_nop 7"); A("s_nop 7")
        for i in range(0, 16, 2): A(f"v_max3_f32 v{MX}, v{MX}, v{s+i}, v{s+i+1}")
        A(f"s_add_u32 s{S_I}, s{S_I}, 1"); A(f"s_cmp_lt_u32 s{S_I}, 64"); A("s_cbranch_scc1 L_fb1")
        for i in range(16): A(f"v_mov_b32 v{s+i}, v{MX}")
        self.rowmax_to_nm()
        for i in range(16): A(f"v_mov_b32 v{O+i}, 0")
        for i in range(4): A(f"v_mov_b32 v{L+i}, 0")
        A(f"s_mov_b32 s{S_I}, 0")
        A.label("L_fb2")
        toff()
        for f, r in enumerate((K, K+4, V[0], V[0]+4)):
            A(f"buffer_load_dwordx4 {vr(r,4)}, v{VL16}, s[{SWS}:{SWS+3}], s{S_O} offen offset:{1024*f} sc1")
        A("s_waitcnt vmcnt(0)")
        A(mfma32(s, K, Q, NM)); A(mfma32(s, K+4, Q+4, s))
        A("s_nop 7"); A("s_nop 7")
        for i in range(16): A(f"v_exp_f32 v{s+i}, v{s+i}")
        A("s_nop 0")
        for i in range(8): A(f"v_cvt_pk_bf16_f32 v{p+i}, v{s+2*i}, v{s+2*i+1}")
        A("s_nop 1")
        A(mfma32(O, V[0], p, O)); A(mfma32(O, V[0]+4, p+4, O))
        A(f"v_smfmac_f32_16x16x64_bf16 {vr(L,4)}, {vr(ONES,4)}, {vr(p,8)}, v{IDX}")
        A(f"s_add_u32 s{S_I}, s{S_I}, 1"); A(f"s_cmp_lt_u32 s{S_I}, 64")
        A("s_nop 7"); A("s_nop 7")
        A("s_cbranch_scc1 L_fb2")
        A("s_branch L_att_fin")

    def vm_reset(self): self.vm = []
    def vm_add(self, tag, n=1): self.vm += [tag] * n
    def vm_wait(self, tag):
        idx = [i for i, t in enumerate(self.vm) if t == tag]
        if not idx: return
        n = len(self.vm) - 1 - idx[-1]
        self.A(f"s_waitcnt vmcnt({min(n,63)})")
        self.vm = self.vm[idx[-1]+1:]
    def vm_all(self):
        self.A("s_waitcnt vmcnt(0)"); self.vm = []

    def only(self, u):
        g = self
        class C:
            def __enter__(s_):
                s_.lab = g.A.newlabel("L_only")
                g.A(f"s_cmp_lg_u32 s{S_U}, {u}")
                g.A(f"s_cbranch_scc1 {s_.lab}")
            def __exit__(s_, *a): g.A.label(s_.lab)
        return C()

    def last_arriver(self, cnt_index, body, n=4):
        A = self.A
        lab = A.newlabel("L_last")
        if cnt_index == "grp":
            A(f"s_and_b32 s3, s{S_WAVE}, 4"); A(f"s_add_u32 s3, s3, {L_LAND + 16}"); A("v_mov_b32 v14, s3")
        else: A(f"v_mov_b32 v14, {L_CNT + 4*cnt_index}")
        A("v_mov_b32 v15, 1")
        A("s_mov_b64 exec, 1")
        A("ds_add_rtn_u32 v16, v14, v15")
        A("s_waitcnt lgkmcnt(0)")
        A("s_mov_b64 exec, -1")
        A("v_readfirstlane_b32 s3, v16")
        A("s_nop 1")
        A(f"s_cmp_lg_u32 s3, {n-1}")
        A(f"s_cbranch_scc1 {lab}")
        body()
        A.label(lab)

    def set_flag(self, soff_code):
        A = self.A
        soff_code()
        A("v_mov_b32 v14, 0")
        A(f"v_mov_b32 v15, s{S_TAG}")
        A("s_mov_b64 exec, 1")
        A(f"buffer_store_dword v15, v14, s[{SWS}:{SWS+3}], s3 offen sc1")
        A("s_mov_b64 exec, -1")

    def helper_p1(self):
        A = self.A
        AHEAD = self.o.get("ahead", 3)
        A.label("L_helper")
        A(f"s_sub_u32 s{S_U}, s{S_WAVE}, 8")
        A("s_setprio 3")
        if self.stamp: A("v_mov_b32 v167, 0")
        A("v_mov_b32 v166, v0")
        A("v_lshlrev_b32 v165, 4, v0")
        A("v_lshrrev_b32 v1, 3, v0")
        A("v_lshrrev_b32 v2, 4, v0")
        A("v_and_b32 v3, 7, v0")
        A("v_xor_b32 v4, v2, v3")
        A("v_lshlrev_b32 v4, 4, v4")
        A("v_lshl_add_u32 v10, v1, 11, v4")
        A("v_xor_b32 v11, 64, v10")
        A("v_and_b32 v2, 1, v2")
        A("v_lshlrev_b32 v2, 2, v2")
        A("v_xor_b32 v2, v2, v3")
        A("v_lshlrev_b32 v13, 4, v2")
        A("s_movk_i32 s3, 6144")
        A("v_mul_lo_u32 v5, v1, s3")
        A("v_add_u32 v12, v5, v13")
        A("v_mov_b32 v6, v12")
        if self.o.get("g16", 1):
            A("v_bfe_u32 v2, v0, 4, 1"); A("v_lshlrev_b32 v2, 1, v2"); A("v_xor_b32 v2, v2, v3")
            A("v_lshl_add_u32 v12, v2, 4, v5"); A("v_xor_b32 v6, 64, v12")
        S_XO, S_WO, S_K, S_A, S_B = S_TMP, S_TMP+1, S_TMP+2, S_TMP+3, S_TMP+4
        A(f"s_lshl_b32 s{S_XO}, s{S_RB}, 18")
        A(f"s_lshl_b32 s3, s{S_U}, 16")
        A(f"s_add_u32 s{S_XO}, s{S_XO}, s3")
        A(f"s_mul_i32 s{S_WO}, s{S_U}, {16*6144}")
        A(f"s_lshl_b32 s3, s{S_HP}, 7")
        A(f"s_add_u32 s{S_WO}, s{S_WO}, s3")
        S_CLS = S_TMP + 5
        S_TB = S_TMP + 8
        if self.rot in (4, 5, 6):
            tabs = []
            for c in range(4):
              if self.rot == 5:
                per = [[1,2,3,4],[5,6,7,8],[9,10,11,12],[13,14,15]]
                seq = [0, per[0][c]]
                for p in range(4):
                    slots = [k for i, k in enumerate(per[p]) if i != c]
                    if p < 3 and c < len(per[p+1]): slots.insert(c, per[p+1][c])
                    seq += slots
              elif self.rot == 6:
                per = [[2,3,4,5],[6,7,8,9],[10,11,12,13],[14,15]]
                seq = [c & 1, per[0][c], 1 - (c & 1)]
                for p in range(4):
                    slots = [k for i, k in enumerate(per[p]) if i != c]
                    if p < 3 and c < len(per[p+1]): slots.insert(c, per[p+1][c])
                    seq += slots
              else:
                seq = [c]
                for p in range(4):
                    fol = [4*p + k for k in range(4) if k != c]
                    slots = list(fol)
                    if p < 3: slots.insert(c, 4*(p+1) + c)
                    seq += slots
              assert sorted(seq) == list(range(16)), seq
              tabs.append(sum(v << (4*i) for i, v in enumerate(seq)))
            A("s_lshr_b32 s4, s2, 3"); A("s_lshr_b32 s5, s4, 3"); A("s_add_u32 s4, s4, s5"); A("s_and_b32 s4, s4, 3")
            A(f"s_mov_b32 s{S_CLS}, s4")
            A(f"s_mov_b32 s{S_TB}, {hex(tabs[0] & 0xffffffff)}"); A(f"s_mov_b32 s{S_TB+1}, {hex(tabs[0] >> 32)}")
            for c in range(1, 4):
                A(f"s_cmp_eq_u32 s4, {c}")
                A(f"s_cselect_b32 s{S_TB}, {hex(tabs[c] & 0xffffffff)}, s{S_TB}"); A(f"s_cselect_b32 s{S_TB+1}, {hex(tabs[c] >> 32)}, s{S_TB+1}")
        elif self.rot == 0:
            A(f"s_mov_b32 s{S_TB}, 0x76543210"); A(f"s_mov_b32 s{S_TB+1}, 0xfedcba98")
        def kst(dst, s_):
            A(f"s_bfe_u32 s{dst}, s{S_TB + (s_ >> 3)}, {hex((4 << 16) | (4 * (s_ & 7)))}")
        if self.rot in (0, 4, 5, 6): pass
        elif self.rot == 2:
            A("s_lshr_b32 s4, s2, 3")
            A("s_and_b32 s3, s4, 7"); A("s_lshl_b32 s3, s3, 1")
            A("s_lshr_b32 s4, s4, 3"); A("s_lshl_b32 s4, s4, 2")
            A("s_add_u32 s3, s3, s4"); A(f"s_and_b32 s{S_K}, s3, 15")
        if self.rot == 2:
            A(f"s_mov_b32 s6, 0x76543210"); A(f"s_mov_b32 s7, 0xfedcba98")
            A(f"s_lshl_b32 s3, s{S_K}, 2"); A(f"s_lshr_b64 s[{S_TB}:{S_TB+1}], s[6:7], s3")
            A("s_sub_u32 s3, 64, s3"); A("s_lshl_b64 s[6:7], s[6:7], s3")
            A(f"s_cmp_eq_u32 s{S_K}, 0"); A("s_cselect_b64 s[6:7], 0, s[6:7]")
            A(f"s_or_b64 s[{S_TB}:{S_TB+1}], s[{S_TB}:{S_TB+1}], s[6:7]")
        self.vm_reset()
        def issue(s):
            slot = (s % G_NSLOT) * G_STAGE
            kst(S_K, s)
            A(f"s_lshl_b32 s{S_A}, s{S_U}, 12")
            A(f"s_add_u32 s{S_A}, s{S_A}, {slot}")
            A(f"s_lshl_b32 s{S_B}, s{S_K}, 7")
            A(f"s_add_u32 s{S_B}, s{S_B}, s{S_XO}")
            for i in range(4):
                A(f"s_mov_b32 m0, s{S_A}")
                A(f"s_add_u32 s{S_A}, s{S_A}, 1024")
                A(f"buffer_load_dwordx4 v{10+(i&1)}, s[{SX}:{SX+3}], s{S_B} offen lds")
                if i < 3: A(f"s_add_u32 s{S_B}, s{S_B}, 16384")
            A(f"s_lshl_b32 s{S_A}, s{S_U}, 11")
            A(f"s_add_u32 s{S_A}, s{S_A}, {slot+16384}")
            A(f"s_mul_i32 s{S_B}, s{S_K}, {64*6144}")
            A(f"s_add_u32 s{S_B}, s{S_B}, s{S_WO}")
            for q in range(2):
                for seg in range(3):
                    A(f"s_mov_b32 m0, s{S_A}")
                    A(f"s_add_u32 s{S_A}, s{S_A}, {8192 if seg < 2 else (1024-16384) & 0xffffffff}")
                    A(f"buffer_load_dwordx4 v{(12, 6)[q]}, s[{SW}:{SW+3}], s{S_B} offen lds")
                    if not (q == 1 and seg == 2):
                        A(f"s_add_u32 s{S_B}, s{S_B}, {2048 if seg < 2 else 8*6144-4096}")
            self.vm_add(("g", s), 10)
        with self.only(3):
            srd(A, SA, P_WR, 2048); srd(A, SB, P_GW, 2048)
            for i, sr_ in enumerate((SA, SA, SB, SB)):
                A(f"s_mov_b32 m0, {L_WR + (i >> 1) * 2048}"); A("s_nop 0")
                A(f"buffer_load_dwordx4 v165, s[{sr_}:{sr_+3}], 0 offen offset:{(i & 1) * 1024} lds")
            A(f"s_and_b32 s3, s{S_HP}, 1"); A("s_lshl_b32 s3, s3, 6")
            A("v_xor_b32 v17, s3, v4")
            A(f"v_add_u32 v17, {L_WR}, v17")
            A(f"s_lshl_b32 s3, s{S_HP}, 10")
            A("v_add_u32 v18, s3, v165")
            A("v_mov_b32 v24, 0"); A("v_mov_b32 v25, 0")
        self.stampit(167)
        issue(0); issue(1)
        self.vm_wait(("g", 0))
        self.stampit(167)
        A("s_barrier")
        nxt = 2
        for s in range(16):
            while nxt < 16 and nxt < s + AHEAD and nxt < s + G_NSLOT:
                issue(nxt); nxt += 1
                if nxt == 16:
                    A("v_mov_b32 v27, 0")
                    A(f"buffer_load_dword v26, v27, s[{SDBG}:{SDBG+3}], 0 offen sc1")
                    self.vm_add("tag", 1)
                    A(f"s_lshl_b32 s3, s{S_HP}, 4"); A(f"s_and_b32 s4, s{S_RB}, 8"); A("s_add_u32 s3, s3, s4"); A("s_lshl_b32 s3, s3, 7"); A(f"s_add_u32 s3, s3, {WS_FA}")
                    A("v_and_b32 v9, 7, v166"); A("v_lshlrev_b32 v9, 7, v9")
                    A(f"buffer_load_dword v8, v9, s[{SWS}:{SWS+3}], s3 offen")
                    self.vm_add("touch", 1)
                    with self.only(1):
                        A(f"s_lshl_b32 s3, s{S_HP}, 17"); A(f"s_lshl_b32 s4, s{S_RB}, 13"); A("s_add_u32 s3, s3, s4"); A(f"s_add_u32 s3, s3, {WS_QA}")
                        A("v_lshlrev_b32 v9, 7, v166")
                        A(f"buffer_load_dword v8, v9, s[{SWS}:{SWS+3}], s3 offen")
                    A(f"s_lshl_b32 s3, s{S_HP}, 19"); A(f"s_lshl_b32 s4, s{S_RB}, 15"); A("s_add_u32 s3, s3, s4")
                    A(f"s_lshl_b32 s4, s{S_U}, 13"); A("s_add_u32 s3, s3, s4"); A(f"s_add_u32 s3, s3, {WS_KVA}")
                    A("v_lshlrev_b32 v9, 7, v166")
                    if self.o.get("tsplit", 1): A("s_mov_b32 exec_hi, 0")
                    A(f"buffer_load_dword v8, v9, s[{SWS}:{SWS+3}], s3 offen")
                    A("s_mov_b64 exec, -1")
                    self.vm_add("touch", 1)
                if self.o.get("tsplit", 1) and self.rot >= 4 and 10 <= nxt <= 13:
                    lab = A.newlabel("L_t")
                    A(f"s_cmp_lg_u32 s{S_CLS}, {nxt-10}"); A(f"s_cbranch_scc1 {lab}")
                    A(f"s_lshl_b32 s3, s{S_HP}, 19"); A(f"s_lshl_b32 s4, s{S_RB}, 15"); A("s_add_u32 s3, s3, s4")
                    A(f"s_lshl_b32 s4, s{S_U}, 13"); A("s_add_u32 s3, s3, s4"); A(f"s_add_u32 s3, s3, {WS_KVA}")
                    A("v_lshlrev_b32 v9, 7, v166")
                    A("s_mov_b32 exec_lo, 0")
                    A(f"buffer_load_dword v8, v9, s[{SWS}:{SWS+3}], s3 offen")
                    A("s_mov_b64 exec, -1")
                    A.label(lab)
            with self.only(3):
                kst(4, s); A("s_lshl_b32 s4, s4, 7")
                A(f"v_add_u32 v19, {(s % G_NSLOT) * G_STAGE}, v18"); A("v_add_u32 v28, s4, v17")
                A("ds_read_b128 v[20:23], v19"); A("ds_read_b128 v[64:67], v28"); A("ds_read_b128 v[68:71], v28 offset:2048")
                A("s_waitcnt lgkmcnt(0)")
                for i in range(4):
                    A(f"v_dot2c_f32_bf16 v24, v{20+i}, v{64+i}")
                    A(f"v_dot2c_f32_bf16 v25, v{20+i}, v{68+i}")
            if s == 15:
                with self.only(0):
                    lab = A.newlabel("L_tagok")
                    save = list(self.vm)
                    self.vm_wait("tag")
                    A("v_readfirstlane_b32 s3, v26")
                    A("s_nop 1")
                    A("s_cmp_lg_u32 s3, 0"); A(f"s_cbranch_scc1 {lab}")
                    self.poll_val(SDBG, 27, "0", 1, 0, 26, ne=True)
                    A.label(lab)
                    A(f"v_mov_b32 v14, {L_TAG}"); A("s_mov_b64 exec, 1"); A("ds_write_b32 v14, v26"); A("s_mov_b64 exec, -1")
                    A("s_waitcnt lgkmcnt(0)")
                    self.vm = save
            if s + 1 < 16: self.vm_wait(("g", s + 1))
            if self.o.get("st1", 0): self.stampit(167)
            A("s_barrier")
        with self.only(0):
            A(f"v_add_u32 v14, {L_CNT}, v165")
            for i in range(4): A(f"v_mov_b32 v{20+i}, 0")
            A("ds_write_b128 v14, v[20:23]"); A("ds_write_b128 v14, v[20:23] offset:1024"); A("ds_write_b128 v14, v[20:23] offset:2048")
            A("s_waitcnt lgkmcnt(0)")
        A("s_barrier")
        self.read_tag(14)
        self.stampit(167)

    def helper_p2(self):
        A = self.A
        S_KVB = S_TMP
        self.vm_reset()
        A(f"s_lshl_b32 s{S_KVB}, s{S_HP}, 19")
        for u in range(1, 4):
            A(f"s_cmp_eq_u32 s{S_U}, {u}"); A(f"s_cbranch_scc1 L_h2_{u}")
        for u in range(4):
            if u: A.label(f"L_h2_{u}")
            self.helper_p2_wave(u)
            self.stamp_flush(167, 14, 166)
            A("s_endpgm")

    def rg_finalize(self):
        A = self.A
        for v in (24, 25):
            A(f"s_nop 1\nv_add_f32_dpp v{v}, v{v}, v{v} quad_perm:[1,0,3,2] row_mask:0xf bank_mask:0xf")
            A(f"s_nop 1\nv_add_f32_dpp v{v}, v{v}, v{v} quad_perm:[2,3,0,1] row_mask:0xf bank_mask:0xf")
            A(f"s_nop 1\nv_add_f32_dpp v{v}, v{v}, v{v} row_half_mirror row_mask:0xf bank_mask:0xf")
        A("v_cvt_pk_bf16_f32 v26, v25, v25")
        A("v_lshlrev_b32 v26, 16, v26")
        A(f"v_mul_f32 v26, {hex(f32bits(-LOG2E))}, v26")
        A("v_exp_f32 v26, v26")
        A("s_nop 0")
        A("v_add_f32 v26, 1.0, v26")
        A("v_rcp_f32 v26, v26")
        A("s_nop 0")
        A("v_cvt_pk_bf16_f32 v26, v26, v26")
        A("v_lshlrev_b32 v26, 16, v26")
        A(f"s_lshl_b32 s3, s{S_RB}, 7"); A(f"s_lshl_b32 s4, s{S_HP}, 3"); A("s_add_u32 s3, s3, s4")
        A("v_lshrrev_b32 v27, 3, v166")
        A("v_add_u32 v27, s3, v27")
        A("v_lshlrev_b32 v14, 2, v27")
        A("s_mov_b32 exec_lo, 0x01010101\ns_mov_b32 exec_hi, 0x01010101")
        A(f"s_mov_b32 s5, {WS_G}")
        A(f"buffer_store_dword v26, v14, s[{SWS}:{SWS+3}], s5 offen sc1")
        A("s_mov_b64 exec, -1")
        A("v_cvt_pk_bf16_f32 v15, v24, v24")
        A("v_lshlrev_b32 v15, 16, v15")
        A("v_ashrrev_i32 v16, 31, v15")
        A("v_or_b32 v16, 0x80000000, v16")
        A("v_and_b32 v16, 0xffff0000, v16")
        A("v_xor_b32 v15, v15, v16")
        A("v_sub_u32 v27, 2047, v27")
        A("v_or_b32 v15, v15, v27")
        A("s_nop 1")
        A("v_readlane_b32 s3, v15, 0")
        for i in range(1, 8):
            A(f"v_readlane_b32 s4, v15, {8*i}")
            A("s_nop 1")
            A("s_max_u32 s3, s3, s4")
        A(f"s_mov_b32 s{S_KEY}, s3")
        self.vm_add("g", 1)
    def rg_count(self):
        A = self.A
        self.vm_wait("g")
        A("s_lshl_b32 s3, s2, 3"); A(f"s_add_u32 s3, s3, {WS_KEYS}")
        A("v_mov_b32 v14, 0"); A(f"v_mov_b32 v16, s{S_KEY}"); A(f"v_mov_b32 v17, s{S_TAG}")
        A("s_mov_b64 exec, 1")
        A(f"buffer_store_dwordx2 v[16:17], v14, s[{SWS}:{SWS+3}], s3 offen sc1")
        A("s_mov_b64 exec, -1")
        self.vm_add("key")

    def lds_spin_ge(self, addr, stride, n, want, sleep=2, bound=None):
        A = self.A
        lab = A.newlabel("L_spin"); done = A.newlabel("L_spind")
        A(f"v_min_u32 v14, {n-1}, v166")
        if stride > 1: A(f"v_mul_u32_u24 v14, {stride}, v14")
        A(f"v_add_u32 v14, {addr}, v14")
        A(f"s_mov_b32 s96, {bound or SPIN_MAX*16}")
        A.label(lab)
        A("ds_read_b32 v16, v14")
        A("s_waitcnt lgkmcnt(0)")
        A(f"v_cmp_gt_u32 vcc, {want}, v16")
        A("s_sub_u32 s96, s96, 1"); A("s_cmp_eq_u32 s96, 0"); A(f"s_cbranch_scc1 {done}")
        A("s_nop 2")
        A(f"s_cbranch_vccz {done}")
        A(f"s_sleep {min(127, sleep * self.o.get('slmul', 1))}")
        A(f"s_branch {lab}")
        A.label(done)

    def class_tick(self, name, sleep=4):
        A = self.A
        tab = dict(B=[1,1,2,2], W1=[7,7,8,8], A=[2,3,3,4], M=[4,4,5,5], C=[5,6,6,7], D=[7,8,7,8])
        tab.update(self.o.get("ticks", {}))
        t = tab[name]
        A(f"s_bfe_u32 s5, s{S_RB}, 0x20001"); A("s_lshl_b32 s5, s5, 2")
        A(f"s_lshr_b32 s5, {hex(sum(v << (4*i) for i, v in enumerate(t)))}, s5"); A("s_and_b32 s5, s5, 15"); A("s_mul_i32 s6, s5, 8"); A("s_add_u32 s6, s6, 10")
        self.lds_spin_ge(L_PROG, 1, 1, "s5", sleep, bound="s6")

    def wo_setup(self):
        A = self.A
        srd(A, SA, P_WO, 1024 * 1024 * 2)
        A("v_lshrrev_b32 v19, 3, v166")
        A("v_lshl_add_u32 v19, v19, 11, v13")
    def issue_wo(self, q):
        A = self.A; S_B = S_TMP + 3
        base = q * 32768
        A("s_lshr_b32 s3, s2, 3"); A("s_and_b32 s3, s3, 15"); A("s_lshl_b32 s3, s3, 7")
        A(f"s_add_u32 s{S_B}, s3, {q*256*2048}")
        for i in range(32):
            A(f"s_mov_b32 m0, {base + i*1024}")
            if i: A(f"s_add_u32 s{S_B}, s{S_B}, 16384")
            else: A("s_nop 0")
            A(f"buffer_load_dwordx4 v19, s[{SA}:{SA+3}], s{S_B} offen lds")

    def helper_p2_wave(self, u):
        if u == 0: self.kv_loader()
        elif u == 1: self.b_wave()
        else: self.moe_wave(u - 2)

    def kv_loader(self):
        A = self.A
        S_KVB, S_L, S_B, S_MODE, S_RM = S_TMP, S_TMP+2, S_TMP+3, S_TMP+4, S_TMP+6
        def landed(v):
            A(f"v_mov_b32 v14, {L_LAND}"); A(f"v_mov_b32 v15, {v}")
            A("ds_write_b32 v14, v15")
        A("v_lshrrev_b32 v17, 3, v166"); A(f"v_xor_b32 v17, s{S_RB}, v17")
        A(f"s_lshl_b32 s5, s{S_HP}, 4"); A("v_add_u32 v17, s5, v17")
        A(f"s_and_b32 s4, s{S_RB}, 1"); A("s_lshl_b32 s6, s4, 2"); A(f"s_add_u32 s6, s6, {WS_FA}")
        A("v_and_b32 v18, 1, v166"); A("v_lshlrev_b32 v18, 3, v18"); A("v_lshl_add_u32 v20, v17, 7, v18"); A("v_add_u32 v20, s6, v20")
        A("v_lshlrev_b32 v17, 2, v17"); A(f"v_add_u32 v17, {WS_F1}, v17")
        A("v_and_b32 v19, 4, v166"); A("v_cmp_eq_u32 vcc, 0, v19")
        A(f"v_mov_b32 v19, s{S_TAG}"); A(f"v_mov_b32 v16, s{S_XCC}")
        A("v_cndmask_b32 v21, v17, v20, vcc"); A("v_cndmask_b32 v22, v19, v16, vcc")
        A(f"s_mov_b64 s[{S_MODE}:{S_MODE+1}], 0"); A(f"s_mov_b32 s{S_RM}, 0")
        A("s_lshl_b32 s4, s4, 14"); A(f"s_add_u32 s{S_KVB}, s{S_KVB}, s4")
        def dma(n):
            for hb in range(n // 4):
                A(f"s_mov_b32 m0, s{S_L}")
                A(f"s_add_u32 s{S_L}, s{S_L}, 4096")
                for i in range(4):
                    A(f"buffer_load_dwordx4 v165, s[{SWS}:{SWS+3}], s{S_B} offen offset:{1024*i} sc1 lds")
                A(f"s_add_u32 s{S_B}, s{S_B}, 4096")
        def wait_free(need, prev):
            lab = A.newlabel("L_free")
            A("v_min_u32 v14, 7, v166"); A("v_lshlrev_b32 v14, 8, v14"); A(f"v_add_u32 v14, {L_PROG}, v14")
            A("ds_read_b32 v16, v14"); A("s_waitcnt lgkmcnt(0)")
            A(f"v_cmp_gt_u32 vcc, {need}, v16"); A("s_nop 4")
            A(f"s_cbranch_vccz {lab}")
            A("s_waitcnt vmcnt(0)"); landed(prev)
            self.lds_spin_ge(L_PROG, 256, 8, need, 4)
            A.label(lab)
        def poll_block(s_):
            lab = A.newlabel("L_poll"); done = A.newlabel("L_polld")
            A(f"s_bitcmp1_b64 s[{S_MODE}:{S_MODE+1}], {8*s_}"); A(f"s_cbranch_scc1 {done}")
            if s_ >= 2:
                A("s_waitcnt vmcnt(0)"); landed(s_ - 1)
            A(f"s_mov_b32 s96, {SPIN_MAX}")
            A("s_mov_b32 exec_lo, 0x03030300"); A("s_mov_b32 exec_hi, 0x03030303")
            A.label(lab)
            A(f"buffer_load_dword v16, v21, s[{SWS}:{SWS+3}], 0 offen sc1")
            A("s_waitcnt vmcnt(0)")
            A("v_cmp_eq_u32 vcc, v22, v16")
            A("s_sub_u32 s96, s96, 1"); A("s_nop 2")
            A("s_lshr_b64 s[4:5], vcc, 1"); A(f"s_and_b64 s[{S_MODE}:{S_MODE+1}], s[4:5], vcc")
            A(f"s_bitcmp1_b64 s[{S_MODE}:{S_MODE+1}], {8*s_}"); A(f"s_cbranch_scc1 {done}")
            A(f"s_bitcmp1_b64 vcc, {8*s_+4}"); A(f"s_cbranch_scc1 {done}")
            A("s_cmp_eq_u32 s96, 0"); A(f"s_cbranch_scc1 {done}")
            A(f"s_cmp_lt_u32 s96, {SPIN_MAX-8}")
            A("s_cselect_b32 exec_lo, 0x13131300, exec_lo"); A("s_cselect_b32 exec_hi, 0x13131313, exec_hi")
            A("s_sleep 1")
            A(f"s_branch {lab}")
            A.label(done)
            A("s_mov_b64 exec, -1")
        S_LD = S_TMP + 7
        A(f"s_mov_b32 s{S_LD}, 0")
        def pick_remote(prev):
            lab = A.newlabel("L_poll"); done = A.newlabel("L_polld")
            A(f"s_andn2_b32 s3, s{S_RM}, s{S_LD}"); A(f"s_cbranch_scc1 {done}")
            A("s_waitcnt vmcnt(0)"); landed(prev)
            A(f"s_lshl_b32 s5, s{S_HP}, 4"); A(f"s_and_b32 s4, s{S_RB}, 8"); A("s_xor_b32 s4, s4, 8"); A("s_add_u32 s5, s5, s4")
            A("s_lshl_b32 s5, s5, 2"); A(f"s_add_u32 s5, s5, {WS_F1}"); A("v_lshlrev_b32 v14, 2, v166")
            A(f"s_mov_b32 s96, {SPIN_MAX}")
            A("s_mov_b64 exec, 0xff")
            A.label(lab)
            A(f"buffer_load_dword v16, v14, s[{SWS}:{SWS+3}], s5 offen sc1")
            A("s_waitcnt vmcnt(0)")
            A(f"v_cmp_eq_u32 vcc, s{S_TAG}, v16")
            A("s_sub_u32 s96, s96, 1"); A("s_cmp_eq_u32 s96, 0"); A("s_cselect_b32 s3, 0xff, 0"); A("s_nop 1")
            A(f"s_or_b32 s{S_RM}, vcc_lo, s3")
            A(f"s_andn2_b32 s3, s{S_RM}, s{S_LD}"); A(f"s_cbranch_scc1 {done}")
            A(f"s_sleep {self.o.get('rsleep', 12)}")
            A(f"s_branch {lab}")
            A.label(done)
            A("s_mov_b64 exec, -1")
            A(f"s_and_b32 s5, s{S_RB}, 6"); A("s_lshl_b32 s4, s3, 8"); A("s_or_b32 s3, s3, s4"); A("s_lshr_b32 s3, s3, s5")
            A("s_ff1_i32_b32 s3, s3"); A("s_add_u32 s3, s3, s5"); A("s_and_b32 s3, s3, 7")
            A(f"s_bitset1_b32 s{S_LD}, s3")
            A(f"s_and_b32 s4, s{S_RB}, 8"); A("s_xor_b32 s4, s4, 8"); A(f"s_or_b32 s{S_B}, s3, s4")
        lab = A.newlabel("L_poll"); done = A.newlabel("L_polld")
        A("v_add_u32 v23, 16, v20"); A("v_and_b32 v19, 4, v166"); A("v_cmp_eq_u32 vcc, 0, v19"); A("s_nop 1")
        A("v_cndmask_b32 v23, v21, v23, vcc")
        A(f"s_mov_b32 s96, {SPIN_MAX}")
        A("s_mov_b64 exec, 0x300")
        A.label(lab)
        A(f"buffer_load_dword v16, v23, s[{SWS}:{SWS+3}], 0 offen sc1")
        A("s_waitcnt vmcnt(0)")
        A("v_cmp_eq_u32 vcc, v22, v16")
        A("s_sub_u32 s96, s96, 1"); A("s_nop 3")
        A("s_cmp_ge_u32 vcc_lo, 0x300"); A(f"s_cbranch_scc1 {done}")
        A("s_cmp_eq_u32 s96, 0"); A(f"s_cbranch_scc1 {done}")
        A(f"s_cmp_lt_u32 s96, {SPIN_MAX-12}"); A("s_cselect_b32 exec_lo, 0x1300, exec_lo")
        A(f"s_branch {lab}")
        A.label(done)
        A("s_mov_b64 exec, -1")
        A("s_and_b32 s3, vcc_lo, 0x300"); A("s_cmp_eq_u32 s3, 0x300"); A(f"s_mov_b32 s6, {WS_QB}"); A(f"s_cselect_b32 s6, {WS_QA}, s6")
        A(f"s_lshl_b32 s3, s{S_HP}, 4"); A(f"s_xor_b32 s4, s{S_RB}, 1"); A("s_add_u32 s3, s3, s4"); A("s_lshl_b32 s3, s3, 13")
        A(f"s_add_u32 s{S_B}, s3, s6"); A(f"s_mov_b32 s{S_L}, {L_R2 + 16384}")
        dma(8)
        A(f"v_mov_b32 v14, {L_LAND + 8}"); A("v_mov_b32 v15, 1")
        A("s_waitcnt vmcnt(0)")
        A("ds_write_b32 v14, v15")
        self.stampit(167)
        for s in range(1, 16):
            if s - 1 == OPS_AT: self.lds_spin_ge(L_CNT + 20, 1, 1, 1, 4)
            if s <= 7:
                poll_block(s)
                if s == 7: self.lds_spin_ge(L_CNT + 16, 1, 1, 1)
                A(f"s_xor_b32 s{S_B}, s{S_RB}, {s}")
                A(f"s_bitcmp1_b64 s[{S_MODE}:{S_MODE+1}], {8*s}")
                A(f"s_cselect_b32 s6, {WS_KVA}, 0")
            else:
                wait_free(max(s - 7, self.o.get('r_at', 4)), s - 1)
                pick_remote(s - 1)
                A("s_mov_b32 s6, 0")
            self.stampit(167)
            A(f"s_lshl_b32 s{S_B}, s{S_B}, 15"); A(f"s_add_u32 s{S_B}, s{S_B}, s{S_KVB}"); A(f"s_add_u32 s{S_B}, s{S_B}, s6")
            A(f"s_mov_b32 s{S_L}, {(s % KV_NSLOT) * KV_SLOT}")
            dma(16)
            if s == 1:
                A("s_waitcnt vmcnt(0)"); landed(1)
            else:
                A("s_waitcnt vmcnt(16)"); landed(s - 1)
        self.wo_setup()
        for q, need in ((0, 10), (1, 12), (2, 14)):
            wait_free(need, 16 + q)
            self.issue_wo(q)
            A("s_waitcnt vmcnt(32)"); landed(16 + q)
            self.stampit(167)
        A("s_waitcnt vmcnt(0)"); landed(19)
        self.stampit(167)
        A("s_and_b32 s3, s2, 7"); A("s_lshl_b32 s3, s3, 1"); A("s_lshr_b32 s4, s2, 7"); A("s_add_u32 s3, s3, s4")
        A("s_lshl_b32 s5, s3, 7"); A(f"s_add_u32 s5, s5, {WS_F3}")
        A(f"v_mov_b32 v15, {L_LAND + 4}")
        self.lds_spin_ge(L_PROG, 256, 8, 16, 2)
        A("v_lshlrev_b32 v14, 3, v166")
        lab = A.newlabel("L_poll"); done = A.newlabel("L_polld")
        A(f"s_mov_b32 s96, {SPIN_MAX}")
        A("s_mov_b64 exec, 0xffff")
        A.label(lab)
        A(f"buffer_load_dwordx2 v[16:17], v14, s[{SWS}:{SWS+3}], s5 offen sc1")
        A("s_waitcnt vmcnt(0)")
        A(f"v_cmp_eq_u32 vcc, s{S_TAG}, v16"); A(f"v_cmp_eq_u32 s[6:7], s{S_TAG}, v17")
        A("s_sub_u32 s96, s96, 1"); A("s_cmp_eq_u32 s96, 0")
        A("s_cselect_b32 s3, 0xffff, 0"); A("s_nop 1")
        A("s_and_b32 s4, vcc_lo, s6"); A("s_or_b32 s3, s4, s3"); A("v_mov_b32 v16, s3"); A("ds_write_b32 v15, v16")
        A("s_cmp_eq_u32 s3, 0xffff"); A(f"s_cbranch_scc1 {done}")
        A(f"s_sleep {self.o.get('p3sleep', 6)}")
        A(f"s_branch {lab}")
        A.label(done)
        A("s_waitcnt lgkmcnt(0)")
        A("s_mov_b64 exec, -1")

    def b_gate(self):
        self.lds_spin_ge(L_LAND, 1, 1, self.o.get("b_land", 7), 4, bound=self.o.get("b_bound", 20))
        self.class_tick("B")

    def b_wave(self):
        A = self.A
        S_KVB, S_BS = S_TMP, S_TMP + 9
        BR = 32
        A(f"s_bitcmp1_b32 s{S_RB}, 0"); A(f"s_cselect_b32 s3, {7*16384}, 0"); A(f"s_cselect_b32 s4, 0, {7*16384}")
        A("v_add_u32 v20, s3, v165"); A("v_add_u32 v21, s4, v165")
        for i in range(32):
            if i in (12, 24): A("s_waitcnt lgkmcnt(4)")
            A(f"ds_read_b128 {vr(BR+4*i,4)}, v{20 + (i >> 4)} offset:{1024*(i & 15)}")
        A(f"s_lshl_b32 s{S_BS}, s{S_RB}, 15"); A(f"s_add_u32 s{S_BS}, s{S_BS}, s{S_KVB}")
        A(f"v_mov_b32 v14, {L_CNT + 16}"); A("v_mov_b32 v15, 1")
        A("s_waitcnt lgkmcnt(0)")
        A("ds_write_b32 v14, v15")
        self.b_gate()
        self.stampit(167)
        for i in range(32):
            A(f"buffer_store_dwordx4 {vr(BR+4*i,4)}, v165, s[{SWS}:{SWS+3}], s{S_BS} offen offset:{1024*(i&3)} sc1")
            if (i & 3) == 3: A(f"s_add_u32 s{S_BS}, s{S_BS}, 4096")
        A("s_waitcnt vmcnt(0)")
        self.lds_spin_ge(L_CNT + 12, 1, 1, 2, 2)
        def c():
            A(f"s_lshl_b32 s3, s{S_HP}, 4"); A(f"s_add_u32 s3, s3, s{S_RB}"); A("s_lshl_b32 s3, s3, 2"); A(f"s_add_u32 s3, s3, {WS_F1}")
        self.set_flag(c)
        self.stampit(167)
        self.wo_setup()
        self.class_tick("W1")
        A("s_lshr_b32 s3, s2, 3"); A("s_and_b32 s3, s3, 15"); A("s_lshl_b32 s3, s3, 7"); A(f"s_add_u32 s3, s3, {3*256*2048}")
        for i in range(32):
            A(f"buffer_load_dwordx4 {vr(32+4*i,4)}, v19, s[{SA}:{SA+3}], s3 offen"); A("s_add_u32 s3, s3, 16384")
        self.stampit(167)
        A(f"v_add_u32 v20, {3*32768}, v165")
        A("s_waitcnt vmcnt(0)")
        self.lds_spin_ge(L_PROG, 256, 8, 16, 2)
        for i in range(32):
            if i in (12, 24): A("s_waitcnt lgkmcnt(4)")
            A(f"ds_write_b128 v20, {vr(32+4*i,4)} offset:{1024*i}")
        A(f"v_mov_b32 v14, {L_CNT}"); A("v_mov_b32 v15, 1")
        A("s_waitcnt lgkmcnt(0)")
        A("ds_write_b32 v14, v15")
        self.stampit(167)

    def moe_wave(self, m):
        A = self.A
        self.m = m
        self.vm_reset()
        if m == 1:
            A(f"v_add_u32 v14, {L_R2 + 8192}, v165")
            for i in range(8): A(f"ds_read_b128 {vr(100+4*i,4)}, v14 offset:{1024*i}")
            A(f"v_mov_b32 v14, {L_CNT + 12}"); A("v_mov_b32 v15, 1"); A("s_waitcnt lgkmcnt(0)"); A("ds_write_b32 v14, v15")
            self.rg_finalize(); self.rg_count()
            self.b_gate()
            A(f"s_lshl_b32 s3, s{S_HP}, 17"); A(f"s_lshl_b32 s4, s{S_RB}, 13"); A("s_add_u32 s3, s3, s4"); A(f"s_add_u32 s3, s3, {WS_QB}")
            for i in range(8):
                A(f"buffer_store_dwordx4 {vr(100+4*i,4)}, v165, s[{SWS}:{SWS+3}], s3 offen offset:{1024*(i&3)} sc1")
                if i == 3: A("s_add_u32 s3, s3, 4096")
            A("s_waitcnt vmcnt(0)")
            A(f"v_mov_b32 v14, {L_CNT + 12}"); A("v_mov_b32 v15, 2"); A("ds_write_b32 v14, v15")
        else:
            self.lds_spin_ge(L_PROG, 1, 1, self.o.get("key_at", 2), 4, bound=30)
            self.get_key()
            A(f"v_mov_b32 v14, {L_CNT + 28}"); A(f"v_mov_b32 v15, s{S_KEY}"); A("ds_write_b32 v14, v15"); A("s_waitcnt lgkmcnt(0)")
            A(f"v_mov_b32 v14, {L_CNT + 20}"); A("v_mov_b32 v15, 1"); A("ds_write_b32 v14, v15")
        if self.moe:
            steps = self.moe_steps()
            for k in ("gate_issue", "key", "gate_mma", "up_mma", "h", "down_mma"):
                steps[k](); self.stampit(167)

    def poll_val(self, srd_, voff, soff, mask, want, vtmp, ne=False, sleep=1):
        A = self.A
        lab = A.newlabel("L_poll"); done = A.newlabel("L_polld")
        A(f"s_mov_b32 s96, {SPIN_MAX}")
        A(f"s_mov_b32 s97, {want}")
        A(f"s_mov_b64 exec, {hex(mask)}")
        A.label(lab)
        if soff.startswith("s"):
            A(f"buffer_load_dword v{vtmp}, v{voff}, s[{srd_}:{srd_+3}], {soff} offen sc1")
        else:
            A(f"buffer_load_dword v{vtmp}, v{voff}, s[{srd_}:{srd_+3}], 0 offen offset:{soff} sc1")
        A("s_waitcnt vmcnt(0)")
        A(f"v_cmp_{'eq' if ne else 'ne'}_u32 vcc, s97, v{vtmp}")
        A("s_sub_u32 s96, s96, 1")
        A("s_cmp_eq_u32 s96, 0")
        A(f"s_cbranch_scc1 {done}")
        A("s_nop 2")
        A(f"s_cbranch_vccz {done}")
        A(f"s_sleep {sleep}")
        A(f"s_branch {lab}")
        A.label(done)
        A("s_mov_b64 exec, -1")
        self.vm = []

    def get_key(self):
        A = self.A
        lab = A.newlabel("L_poll"); done = A.newlabel("L_polld")
        A(f"s_mov_b32 s96, {SPIN_MAX}")
        A(f"s_mov_b32 s5, {WS_KEYS}")
        A.label(lab)
        A(f"buffer_load_dwordx4 v[20:23], v165, s[{SWS}:{SWS+3}], s5 offen sc1")
        A(f"buffer_load_dwordx4 v[24:27], v165, s[{SWS}:{SWS+3}], s5 offen offset:1024 sc1")
        A("s_waitcnt vmcnt(0)")
        for i, v in enumerate((21, 23, 25, 27)): A(f"v_xor_b32 v{28+i}, s{S_TAG}, v{v}")
        A("v_or3_b32 v28, v28, v29, v30"); A("v_or_b32 v28, v28, v31")
        A("v_cmp_ne_u32 vcc, 0, v28")
        A("s_sub_u32 s96, s96, 1"); A("s_cmp_eq_u32 s96, 0"); A(f"s_cbranch_scc1 {done}")
        A("s_nop 2")
        A(f"s_cbranch_vccz {done}")
        A("s_sleep 16")
        A(f"s_branch {lab}")
        A.label(done)
        self.vm = []
        self.key_reduce(20, 16)

    def key_reduce(self, v, t):
        A = self.A
        A(f"v_max_u32 v{t}, v{v}, v{v+2}"); A(f"v_max3_u32 v{t}, v{t}, v{v+4}, v{v+6}")
        for d in ("quad_perm:[1,0,3,2]", "quad_perm:[2,3,0,1]", "row_half_mirror", "row_mirror"):
            A("s_nop 1"); A(f"v_max_u32_dpp v{t}, v{t}, v{t} {d} row_mask:0xf bank_mask:0xf")
        A("s_nop 1")
        A(f"v_readlane_b32 s{S_KEY}, v{t}, 0")
        for l in (16, 32, 48):
            A(f"v_readlane_b32 s3, v{t}, {l}"); A("s_nop 1"); A(f"s_max_u32 s{S_KEY}, s{S_KEY}, s3")
        A(f"s_and_b32 s3, s{S_KEY}, 2047")
        A(f"s_sub_u32 s{S_SEL}, 2047, s3")

    def moe_dma(self, items):
        A = self.A
        for k, (sr_, sreg, off, stride, vreg) in enumerate(items):
            A(f"s_add_u32 s3, s{sreg}, {off}")
            for i in range(4):
                A(f"s_mov_b32 m0, {L_R2 + self.m*12288 + k*4096 + i*1024}")
                if i: A(f"s_add_u32 s3, s3, {8*stride}")
                else: A("s_nop 0")
                A(f"buffer_load_dwordx4 v{vreg}, s[{sr_}:{sr_+3}], s3 offen {self.o.get('moefl', 'nt')} lds")

    def moe_frags(self, k, dst):
        A = self.A
        for c in range(4):
            A(f"ds_read_b64_tr_b16 {vr(dst+4*c,2)}, v17 offset:{k*4096 + c*32}")
            A(f"ds_read_b64_tr_b16 {vr(dst+4*c+2,2)}, v17 offset:{k*4096 + 2048 + c*32}")
        A("s_waitcnt lgkmcnt(0)")
    def moe_mma(self, xf, bf, acc, first):
        for c in range(4): self.A(mfma16(acc + 4*c, xf, bf + 4*c, None if first else acc + 4*c))
    def moe_pick(self, ACC, res):
        A = self.A
        A("v_lshrrev_b32 v15, 4, v166")
        A("s_nop 7")
        A("v_cmp_eq_u32 vcc, 1, v15"); A(f"v_mov_b32 v{res}, v{ACC}"); A("s_nop 0"); A(f"v_cndmask_b32 v{res}, v{res}, v{ACC+4}, vcc")
        A("v_cmp_eq_u32 vcc, 2, v15"); A("s_nop 1"); A(f"v_cndmask_b32 v{res}, v{res}, v{ACC+8}, vcc")
        A("v_cmp_eq_u32 vcc, 3, v15"); A("s_nop 1"); A(f"v_cndmask_b32 v{res}, v{res}, v{ACC+12}, vcc")

    def moe_steps(self):
        A = self.A; m = self.m
        S_M, S_MD, SC = S_TMP + 6, S_TMP + 7, 92
        XF = 40; ACC = 72; ACU = 56; BF = 100
        DFk = lambda k: 148 if k == 0 else BF + 16 * (k - 1)
        gk0 = 128 * m
        dst = (4, 3)[m]; dk0 = 128 * m
        def tick(i): self.class_tick("AMCD"[i])
        G = lambda k: (SA, S_M, k*32*7168, 7168, 18)
        U = lambda k: (SB, S_M, k*32*7168, 7168, 18)
        D = lambda k: (SC, S_MD, k*32*2048, 2048, 19)
        def st_gate_issue():
            srd(A, SA, P_WG, 1024 * 3584 * 2); srd(A, SB, P_WU, 1024 * 3584 * 2); srd(A, SC, P_WD, 3584 * 1024 * 2)
            A("s_cmp_ge_u32 s2, 224")
            A(f"s_cselect_b32 s{SA+2}, 0, s{SA+2}"); A(f"s_cselect_b32 s{SB+2}, 0, s{SB+2}")
            A("v_lshrrev_b32 v19, 3, v166"); A("s_movk_i32 s3, 7168"); A("v_mul_lo_u32 v18, v19, s3")
            A("v_and_b32 v15, 7, v166"); A("v_lshl_add_u32 v18, v15, 4, v18")
            A("v_lshlrev_b32 v19, 11, v19"); A("v_lshl_add_u32 v19, v15, 4, v19")
            A("v_lshrrev_b32 v17, 2, v166"); A("v_lshlrev_b32 v17, 7, v17")
            A("v_and_b32 v15, 3, v166"); A("v_lshl_add_u32 v17, v15, 3, v17")
            A(f"v_add_u32 v17, {L_R2 + m*12288}, v17")
            A("s_and_b32 s3, s2, 3"); A("s_lshl_b32 s3, s3, 8"); A(f"s_add_u32 s3, s3, {gk0}")
            A(f"s_mul_i32 s{S_M}, s3, 7168")
            A("s_lshr_b32 s3, s2, 2"); A("s_lshl_b32 s3, s3, 7"); A(f"s_add_u32 s{S_M}, s{S_M}, s3")
            A("s_lshr_b32 s3, s2, 4"); A("s_mul_i32 s3, s3, 224"); A(f"s_add_u32 s3, s3, {dk0}")
            A(f"s_lshl_b32 s{S_MD}, s3, 11")
            A("s_and_b32 s3, s2, 15"); A("s_lshl_b32 s3, s3, 7"); A(f"s_add_u32 s{S_MD}, s{S_MD}, s3")
            tick(0)
            if self.o.get("a_land"): self.lds_spin_ge(L_LAND, 1, 1, self.o["a_land"], 8, bound=self.o.get("a_bound", 24))
            self.lds_spin_ge(L_PROG, 256, 8, 1, 4)
            self.lds_spin_ge(L_CNT + 12, 1, 1, 1, 4)
            self.moe_dma([G(0), G(1), G(2)])
        def st_key():
            self.lds_spin_ge(L_CNT + 20, 1, 1, 1, 4)
            A(f"v_mov_b32 v14, {L_CNT + 28}"); A("ds_read_b32 v14, v14"); A("s_waitcnt vmcnt(0) lgkmcnt(0)")
            A(f"v_readfirstlane_b32 s{S_KEY}, v14"); A("s_nop 1")
            A(f"s_and_b32 s3, s{S_KEY}, 2047"); A(f"s_sub_u32 s{S_SEL}, 2047, s3")
            A("v_lshrrev_b32 v15, 4, v166"); A("v_lshlrev_b32 v15, 3, v15")
            A("s_and_b32 s3, s2, 3"); A("s_lshl_b32 s3, s3, 9"); A(f"s_add_u32 s3, s3, {gk0*2}")
            A(f"s_lshl_b32 s4, s{S_SEL}, 11"); A("s_add_u32 s3, s3, s4")
            for i in range(8):
                A(f"buffer_load_dwordx2 {vr(XF+2*i,2)}, v15, s[{SX}:{SX+3}], s3 offen offset:{32*i}")
            for k in range(3): self.moe_frags(k, BF + 16*k)
            tick(1)
            self.moe_dma([G(3), U(0), U(1)])
            A("s_waitcnt vmcnt(12)")
            for k in range(3): self.moe_mma(XF + 4*k, BF + 16*k, ACC, k == 0)
        def st_gate_mma():
            A("s_waitcnt vmcnt(0)")
            for k in range(3): self.moe_frags(k, BF + 16*k)
            tick(2)
            self.moe_dma([U(2), U(3), D(0)])
            self.moe_mma(XF + 12, BF, ACC, False)
            self.moe_mma(XF, BF + 16, ACU, True); self.moe_mma(XF + 4, BF + 32, ACU, False)
            self.moe_pick(ACC, 90)
        def st_up_mma():
            A("s_waitcnt vmcnt(0)")
            self.moe_frags(0, BF); self.moe_frags(1, BF + 16); self.moe_frags(2, DFk(0))
            self.moe_mma(XF + 8, BF, ACU, False); self.moe_mma(XF + 12, BF + 16, ACU, False)
            self.moe_pick(ACU, 91)
            A("v_lshlrev_b32 v14, 2, v166"); A(f"v_add_u32 v15, {L_PART + m*512}, v14")
            A("ds_write_b32 v15, v90"); A("ds_write_b32 v15, v91 offset:256")
            A("s_waitcnt lgkmcnt(0)")
            def fin():
                lab = A.newlabel("L_skip"); A("s_cmp_ge_u32 s2, 224"); A(f"s_cbranch_scc1 {lab}")
                A(f"v_lshlrev_b32 v14, 2, v166"); A(f"v_add_u32 v15, {L_PART}, v14")
                A("ds_read_b32 v92, v15"); A("ds_read_b32 v94, v15 offset:256"); A("ds_read_b32 v96, v15 offset:512"); A("ds_read_b32 v97, v15 offset:768")
                A(f"v_mov_b32 v93, s{S_TAG}"); A(f"v_mov_b32 v95, s{S_TAG}"); A("v_lshlrev_b32 v14, 3, v166")
                A("s_waitcnt lgkmcnt(0)")
                A("v_add_f32 v92, v92, v96"); A("v_add_f32 v94, v94, v97")
                A("s_and_b32 s3, s2, 3"); A(f"s_mul_i32 s3, s3, {2*3584*8}"); A("s_lshr_b32 s4, s2, 2"); A("s_lshl_b32 s4, s4, 9")
                A("s_add_u32 s3, s3, s4"); A(f"s_add_u32 s3, s3, {WS_GU}"); A(f"s_add_u32 s4, s3, {3584*8}")
                A(f"buffer_store_dwordx2 v[92:93], v14, s[{SWS}:{SWS+3}], s3 offen sc1")
                A(f"buffer_store_dwordx2 v[94:95], v14, s[{SWS}:{SWS+3}], s4 offen sc1")
                A.label(lab)
            self.last_arriver(1, fin, 2)
            tick(3)
            self.moe_dma([D(k) for k in range(1, dst)])
            A("s_waitcnt vmcnt(0)")
            for k in range(1, dst): self.moe_frags(k - 1, DFk(k))
        def st_h():
            self.lds_spin_ge(L_PROG, 1, 1, self.o.get("h_at", 9), 8)
            A("s_lshr_b32 s3, s2, 4"); A("s_mul_i32 s3, s3, 224"); A(f"s_add_u32 s3, s3, {dk0}"); A("s_lshl_b32 s3, s3, 3")
            A(f"v_min_u32 v14, {16*dst-1}, v166"); A("v_lshlrev_b32 v14, 4, v14"); A("v_add_u32 v14, s3, v14")
            lab = A.newlabel("L_poll"); done = A.newlabel("L_polld")
            A(f"s_mov_b32 s96, {SPIN_MAX}")
            A.label(lab)
            for kq in range(4):
                for k in range(2):
                    A(f"s_mov_b32 s5, {WS_GU + (kq*2+k)*3584*8}")
                    A(f"buffer_load_dwordx4 {vr(56+8*kq+4*k,4)}, v14, s[{SWS}:{SWS+3}], s5 offen sc1")
            A("s_waitcnt vmcnt(0)")
            A(f"v_xor_b32 v16, s{S_TAG}, v57")
            for i in range(1, 16):
                A(f"v_xor_b32 v17, s{S_TAG}, v{57+2*i}"); A("v_or_b32 v16, v16, v17")
            A("v_cmp_ne_u32 vcc, 0, v16")
            A("s_sub_u32 s96, s96, 1"); A("s_cmp_eq_u32 s96, 0"); A(f"s_cbranch_scc1 {done}")
            A("s_nop 2")
            A(f"s_cbranch_vccz {done}")
            A("s_sleep 24")
            A(f"s_branch {lab}")
            A.label(done)
        def st_down_mma():
            for k, o in enumerate((0, 2, 4, 6)):
                A(f"v_add_f32 v{88+k}, v{56+o}, v{64+o}"); A(f"v_add_f32 v{92+k}, v{72+o}, v{80+o}"); A(f"v_add_f32 v{88+k}, v{88+k}, v{92+k}")
            A("v_cvt_pk_bf16_f32 v92, v88, v89"); A("v_cvt_pk_bf16_f32 v93, v90, v91")
            A("v_lshlrev_b32 v88, 16, v92"); A("v_and_b32 v89, 0xffff0000, v92")
            A("v_lshlrev_b32 v90, 16, v93"); A("v_and_b32 v91, 0xffff0000, v93")
            for k in range(2): A(f"v_mul_f32 v{92+k}, {hex(f32bits(-LOG2E))}, v{88+k}")
            for k in range(2): A(f"v_exp_f32 v{92+k}, v{92+k}")
            A("s_nop 0")
            for k in range(2): A(f"v_add_f32 v{92+k}, 1.0, v{92+k}")
            for k in range(2): A(f"v_rcp_f32 v{92+k}, v{92+k}")
            A("s_nop 0")
            for k in range(2): A(f"v_mul_f32 v{92+k}, v{88+k}, v{92+k}")
            A("v_cvt_pk_bf16_f32 v92, v92, v93")
            A("v_lshlrev_b32 v88, 16, v92"); A("v_and_b32 v89, 0xffff0000, v92")
            A("v_mul_f32 v88, v88, v90"); A("v_mul_f32 v89, v89, v91")
            A("v_cvt_pk_bf16_f32 v90, v88, v89")
            A("v_lshlrev_b32 v14, 2, v166"); A(f"v_add_u32 v14, {L_H + m*256}, v14")
            A("ds_write_b32 v14, v90")
            A("v_lshrrev_b32 v15, 4, v166"); A("v_lshlrev_b32 v15, 3, v15"); A(f"v_add_u32 v15, {L_H + m*256}, v15")
            A("s_waitcnt lgkmcnt(0)")
            for i in range(2 * dst): A(f"ds_read_b64 {vr(XF+2*i,2)}, v15 offset:{32*i}")
            A("s_waitcnt lgkmcnt(0)")
            for k in range(dst): self.moe_mma(XF + 4*k, DFk(k), ACC, k == 0)
            self.moe_pick(ACC, 90)
            A("v_lshlrev_b32 v14, 2, v166"); A(f"v_add_u32 v15, {L_PART + 1536 + m*256}, v14")
            A("ds_write_b32 v15, v90")
            A("s_waitcnt lgkmcnt(0)")
            def fin():
                A(f"v_lshlrev_b32 v14, 2, v166"); A(f"v_add_u32 v15, {L_PART + 1536}, v14")
                A("ds_read_b32 v92, v15"); A("ds_read_b32 v94, v15 offset:256")
                A(f"v_mov_b32 v93, s{S_TAG}"); A("v_lshlrev_b32 v14, 3, v166")
                A("s_waitcnt lgkmcnt(0)")
                A("v_add_f32 v92, v92, v94")
                A("s_lshr_b32 s3, s2, 4"); A("s_lshl_b32 s3, s3, 13"); A("s_and_b32 s4, s2, 15"); A("s_lshl_b32 s4, s4, 9")
                A("s_add_u32 s3, s3, s4"); A(f"s_add_u32 s3, s3, {WS_YP}")
                A(f"buffer_store_dwordx2 v[92:93], v14, s[{SWS}:{SWS+3}], s3 offen sc1")
            self.last_arriver(2, fin, 2)
        return dict(gate_issue=st_gate_issue, key=st_key, gate_mma=st_gate_mma, up_mma=st_up_mma, h=st_h, down_mma=st_down_mma)

    def p3_operands(self):
        A = self.A
        VL16, VLANE = 165, 166
        S_RT, S_CT, S_OB, S_R = S_TMP+10, S_TMP+11, S_TMP+12, S_TMP+13
        XR, GR, VOUT = 140, 148, 149
        A("s_and_b32 s3, s2, 7"); A("s_lshl_b32 s3, s3, 1"); A("s_lshr_b32 s4, s2, 7"); A(f"s_add_u32 s{S_RT}, s3, s4")
        A("s_lshr_b32 s3, s2, 3"); A(f"s_and_b32 s{S_CT}, s3, 15")
        A(f"s_and_b32 s3, s{S_WAVE}, 3"); A(f"s_lshl_b32 s4, s{S_RT}, 2"); A(f"s_add_u32 s{S_R}, s3, s4")
        A(f"v_and_b32 v150, 31, v{VLANE}")
        A(f"s_lshl_b32 s3, s{S_R}, 5"); A("v_add_u32 v150, s3, v150")
        A(f"v_lshrrev_b32 v151, 5, v{VLANE}")
        A(f"s_lshr_b32 s4, s{S_WAVE}, 2"); A("s_lshl_b32 s4, s4, 6"); A(f"s_lshl_b32 s5, s{S_CT}, 7"); A("s_add_u32 s4, s4, s5")
        A("v_lshlrev_b32 v155, 11, v150"); A("v_add_u32 v155, s4, v155")
        A(f"v_lshl_add_u32 v{VOUT}, v151, 4, v155")
        for G in range(2): A(f"buffer_load_dwordx4 {vr(XR+4*G,4)}, v{VOUT}, s[{SX}:{SX+3}], 0 offen offset:{32*G}")
        A("v_lshlrev_b32 v155, 2, v150"); A(f"s_mov_b32 s5, {WS_G}")
        A(f"buffer_load_dword v{GR}, v155, s[{SWS}:{SWS+3}], s5 offen sc1")
        if hasattr(self, "vm"): self.vm_add("p3op", 6)

    def p3_setup(self):
        A = self.A
        VL16, VLANE = 165, 166
        S_RT, S_CT, S_OB, S_R = S_TMP+10, S_TMP+11, S_TMP+12, S_TMP+13
        VK, VS = 112, 113
        srd(A, SB, P_OUT, 2048 * 1024 * 2)
        A(f"v_bfe_u32 v114, v{VLANE}, 2, 2"); A("v_lshl_add_u32 v114, v151, 2, v114"); A("v_lshlrev_b32 v114, 7, v114")
        A(f"v_and_b32 v115, 3, v{VLANE}"); A("v_lshl_add_u32 v114, v115, 3, v114")
        A(f"v_bfe_u32 v115, v{VLANE}, 4, 1"); A("v_lshl_add_u32 v114, v115, 5, v114")
        A(f"s_lshr_b32 s4, s{S_WAVE}, 2")
        A(f"v_bfe_u32 v115, v{VLANE}, 3, 1"); A("v_xor_b32 v115, s4, v115")
        A(f"v_lshl_add_u32 v{VK}, v115, 6, v114")
        A("s_lshl_b32 s5, s4, 16"); A(f"v_add_u32 v{VK}, s5, v{VK}")
        A(f"v_xor_b32 v{VS}, 64, v{VK}")
        A(f"s_lshl_b32 s{S_OB}, s{S_R}, 16"); A("s_lshl_b32 s5, s4, 15"); A(f"s_add_u32 s{S_OB}, s{S_OB}, s5"); A(f"s_add_u32 s{S_OB}, s{S_OB}, {WS_O}")

    def p3_pre(self, nwait):
        A = self.A
        XR, T2 = 140, 80
        A(f"v_mov_b32 v120, {L_CNT + 28}"); A("ds_read_b32 v120, v120")
        A(f"s_waitcnt vmcnt({nwait}) lgkmcnt(0)")
        A(f"v_readfirstlane_b32 s{S_KEY}, v120")
        for G in (0, 2):
            A(f"v_permlane32_swap_b32 v{XR+2*G}, v{XR+2*G+2}"); A(f"v_permlane32_swap_b32 v{XR+2*G+1}, v{XR+2*G+3}")
        A(f"s_and_b32 s3, s{S_KEY}, 2047"); A(f"s_sub_u32 s{S_SEL}, 2047, s3")
        A("v_sub_f32 v115, 1.0, v148"); A("v_cvt_pk_bf16_f32 v115, v115, v115"); A("v_lshlrev_b32 v115, 16, v115")
        for G in range(4):
            for d in range(2):
                x = XR + 2*G + d; o = T2 + 4*G + 2*d
                A(f"v_lshlrev_b32 v{o}, 16, v{x}"); A(f"v_and_b32 v{o+1}, 0xffff0000, v{x}")
        for r in range(17, 32): A(f"v_mov_b32 v{r}, 0")
        for r in range(14): A(f"v_mov_b32 v{r}, 0")

    def p3(self):
        A = self.A
        A.label("L_p3")
        VL16, VLANE = 165, 166
        S_RT, S_CT, S_OB, S_R = S_TMP+10, S_TMP+11, S_TMP+12, S_TMP+13
        XR, GR, VOUT = 140, 148, 149
        VK, VS = 112, 113
        T2 = 80; YR = 96
        labn = A.newlabel("L_nomoe")
        A(f"s_lshr_b32 s3, s{S_SEL}, 5")
        A(f"s_cmp_lg_u32 s3, s{S_R}")
        A(f"s_cbranch_scc1 {labn}")
        if self.moe:
            A(f"v_and_b32 v14, 31, v{VLANE}"); A("v_lshlrev_b32 v14, 3, v14"); A("v_lshl_add_u32 v14, v151, 16, v14")
            A(f"s_lshr_b32 s4, s{S_WAVE}, 2"); A("s_lshl_b32 s4, s4, 8"); A(f"s_lshl_b32 s5, s{S_CT}, 9"); A("s_add_u32 s4, s4, s5"); A(f"s_add_u32 s6, s4, {WS_YP}")
            lab = A.newlabel("L_poll"); done = A.newlabel("L_polld")
            A(f"s_mov_b32 s96, {SPIN_MAX}")
            A.label(lab)
            A("s_mov_b32 s4, s6")
            for i in range(8):
                A(f"buffer_load_dwordx2 {vr(32+2*i,2)}, v14, s[{SWS}:{SWS+3}], s4 offen sc1")
                A("s_add_u32 s4, s4, 8192")
            A("s_waitcnt vmcnt(0)")
            A(f"v_xor_b32 v16, s{S_TAG}, v33")
            for i in range(1, 8):
                A(f"v_xor_b32 v17, s{S_TAG}, v{33+2*i}"); A("v_or_b32 v16, v16, v17")
            A("v_cmp_ne_u32 vcc, 0, v16")
            A("s_sub_u32 s96, s96, 1"); A("s_cmp_eq_u32 s96, 0"); A(f"s_cbranch_scc1 {done}")
            A("s_nop 2")
            A(f"s_cbranch_vccz {done}")
            A("s_sleep 4")
            A(f"s_branch {lab}")
            A.label(done)
            A(f"s_and_b32 s3, s{S_KEY}, 0xffff0000"); A("s_bitcmp1_b32 s3, 31"); A("s_mov_b32 s4, 0xffff0000")
            A("s_cselect_b32 s4, 0x80000000, s4"); A("s_xor_b32 s3, s3, s4")
            A(f"v_mov_b32 v30, {hex(f32bits(-LOG2E))}"); A("v_mul_f32 v30, s3, v30"); A("v_exp_f32 v30, v30"); A("s_nop 0")
            A("v_add_f32 v30, 1.0, v30"); A("v_rcp_f32 v30, v30"); A("s_nop 0")
            A("v_cvt_pk_bf16_f32 v30, v30, v30"); A("v_lshlrev_b32 v30, 16, v30")
            A("v_add_f32 v20, v32, v34")
            for i in range(2, 8): A(f"v_add_f32 v20, v20, v{32+2*i}")
            A("v_mov_b32 v21, v20"); A("s_nop 1"); A("v_permlane32_swap_b32 v20, v21"); A("s_nop 1"); A("v_add_f32 v20, v20, v21")
            A("v_cvt_pk_bf16_f32 v20, v20, v20"); A("v_lshlrev_b32 v20, 16, v20"); A("v_mul_f32 v20, v20, v30")
            A("v_cvt_pk_bf16_f32 v20, v20, v20"); A("v_lshlrev_b32 v20, 16, v20")
            A("v_lshlrev_b32 v21, 4, v151")
            for r in range(16):
                A(f"ds_bpermute_b32 v{YR+r}, v21, v20 offset:{(8*(r>>2)+(r&3))*4}")
                if r == 7: A("s_waitcnt lgkmcnt(0)")
            A(f"v_cmp_eq_u32 vcc, s{S_SEL}, v150")
            A("s_waitcnt lgkmcnt(0)")
            for r in range(16): A(f"v_cndmask_b32 v{YR+r}, 0, v{YR+r}, vcc")
            for r in range(16): A(f"v_add_f32 v{T2+r}, v{T2+r}, v{YR+r}")
            for r in (17, 20, 21, 30): A(f"v_mov_b32 v{r}, 0")
        A.label(labn)
        for r in range(16): A(f"v_mul_f32 v{T2+r}, v115, v{T2+r}")
        self.stampit(167)
        OF = [32, 48]; WF = [64, 72]
        S_RDY, S_ISS, S_ROT, S_CNT, S_FL = S_TMP, S_TMP+1, S_TMP+2, S_TMP+3, S_TMP+4
        S_BLK = [S_TMP+5, S_TMP+6]; S_SH = S_TMP + 7
        A(f"s_mov_b32 s{S_RDY}, 0"); A(f"s_mov_b32 s{S_ISS}, 0"); A(f"s_lshr_b32 s{S_ROT}, s{S_CT}, 1")
        A(f"s_lshl_b32 s{S_FL}, s{S_RT}, 6"); A(f"s_add_u32 s{S_FL}, s{S_FL}, {WS_F3}")
        A(f"v_lshlrev_b32 v119, 2, v{VLANE}")
        A(f"v_mov_b32 v118, {L_LAND + 4}")
        A(f"s_lshr_b32 s{S_SH}, s{S_WAVE}, 2"); A(f"s_lshl_b32 s{S_SH}, s{S_SH}, 3")
        def poll():
            lab = A.newlabel("L_poll"); done = A.newlabel("L_polld")
            A(f"s_mov_b32 s96, {SPIN_MAX*64}")
            A.label(lab)
            A("ds_read_b32 v120, v118"); A("s_waitcnt lgkmcnt(0)")
            A("v_readfirstlane_b32 s3, v120"); A("s_nop 1")
            A(f"s_lshr_b32 s3, s3, s{S_SH}"); A(f"s_and_b32 s{S_RDY}, s3, 0xff")
            A(f"s_andn2_b32 s3, s{S_RDY}, s{S_ISS}")
            A(f"s_cbranch_scc1 {done}")
            A("s_sub_u32 s96, s96, 1"); A("s_cmp_eq_u32 s96, 0")
            A(f"s_cselect_b32 s{S_RDY}, 0xff, s{S_RDY}"); A(f"s_cbranch_scc1 {done}")
            A("s_sleep 1")
            A(f"s_branch {lab}")
            A.label(done)
            A("s_waitcnt lgkmcnt(0)")
            A("s_mov_b64 exec, -1")
        def issue(b):
            A(f"s_andn2_b32 s3, s{S_RDY}, s{S_ISS}")
            A("s_lshl_b32 s4, s3, 8"); A("s_or_b32 s3, s3, s4"); A(f"s_lshr_b32 s3, s3, s{S_ROT}")
            A("s_ff1_i32_b32 s3, s3"); A(f"s_add_u32 s3, s3, s{S_ROT}"); A(f"s_and_b32 s{S_BLK[b]}, s3, 7")
            A(f"s_bitset1_b32 s{S_ISS}, s{S_BLK[b]}")
            A(f"s_lshl_b32 s3, s{S_BLK[b]}, 12"); A(f"s_add_u32 s3, s3, s{S_OB}")
            for i in range(4):
                A(f"buffer_load_dwordx4 {vr(OF[b]+4*i,4)}, v{VL16}, s[{SWS}:{SWS+3}], s3 offen offset:{1024*i} sc1")
        def process(b, younger):
            A(f"s_lshl_b32 s3, s{S_BLK[b]}, 13")
            A(f"v_add_u32 v116, s3, v{VK}"); A(f"v_add_u32 v117, s3, v{VS}")
            def wread(i):
                w = WF[i & 1]
                A(f"ds_read_b64_tr_b16 {vr(w,2)}, v116 offset:{2048*i}"); A(f"ds_read_b64_tr_b16 {vr(w+2,2)}, v116 offset:{2048*i+1024}")
                A(f"ds_read_b64_tr_b16 {vr(w+4,2)}, v117 offset:{2048*i}"); A(f"ds_read_b64_tr_b16 {vr(w+6,2)}, v117 offset:{2048*i+1024}")
            wread(0)
            for i in range(4):
                if i < 3:
                    wread(i + 1); A(f"s_waitcnt vmcnt({younger+3-i}) lgkmcnt(4)")
                else: A(f"s_waitcnt vmcnt({younger}) lgkmcnt(0)")
                w = WF[i & 1]
                A(mfma32(0, w, OF[b] + 4*i, 0)); A(mfma32(16, w + 4, OF[b] + 4*i, 16))
            if self.o.get("st3", 0): self.stampit(167)
        A(f"s_lshr_b32 s7, s{S_WAVE}, 2"); A("s_add_u32 s5, s7, 18")
        self.lds_spin_ge(L_LAND, 1, 1, "s5", 2)
        self.lds_spin_ge(L_CNT, 1, 1, "s7", 2)
        if self.o.get("st3", 0): self.stampit(167)
        poll(); issue(0)
        for r in (14, 15, 16): A(f"v_mov_b32 v{r}, 0")
        self.stampit(167)
        A(f"s_mov_b32 s{S_CNT}, 4")
        A.raw(".p2align 6")
        A.label("L_p3loop")
        for b in range(2):
            lb = A.newlabel("L_pb"); lj = A.newlabel("L_pj")
            if b == 1:
                A(f"s_sub_u32 s{S_CNT}, s{S_CNT}, 1"); A(f"s_cmp_eq_u32 s{S_CNT}, 0"); A("s_cbranch_scc1 L_p3last")
            A(f"s_andn2_b32 s3, s{S_RDY}, s{S_ISS}"); A(f"s_cbranch_scc0 {lb}")
            issue(1 - b); process(b, 4)
            A(f"s_branch {lj}" if b == 0 else "s_branch L_p3loop")
            A.label(lb)
            process(b, 0); poll(); issue(1 - b)
            if b == 0: A.label(lj)
            else: A("s_branch L_p3loop")
        A.label("L_p3last")
        process(1, 0)
        self.stampit(167)
        A(f"s_lshl_b32 s3, s{S_WAVE}, 12"); A(f"s_add_u32 s3, s3, {L_R2}"); A(f"v_add_u32 v116, s3, v{VL16}")
        A("s_xor_b32 s3, s3, 16384"); A(f"v_add_u32 v117, s3, v{VL16}")
        A("s_barrier")
        A("s_nop 7")
        for r in range(4): A(f"ds_write_b128 v116, {vr(16+4*r,4)} offset:{1024*r}")
        A("s_waitcnt lgkmcnt(0)")
        A("s_barrier")
        for r in range(4): A(f"ds_read_b128 {vr(16+4*r,4)}, v117 offset:{1024*r}")
        for h in range(2):
            A(f"s_waitcnt lgkmcnt({2-2*h})")
            for r in range(8*h, 8*h+8): A(f"v_add_f32 v{r}, v{r}, v{16+r}")
            for r in range(8*h, 8*h+8): A(f"v_fma_f32 v{r}, v{GR}, v{r}, v{T2+r}")
            for i in range(4*h, 4*h+4): A(f"v_cvt_pk_bf16_f32 v{48+i}, v{2*i}, v{2*i+1}")
            A("s_nop 1")
            A(f"v_permlane32_swap_b32 v{48+4*h}, v{48+4*h+2}")
            A(f"v_permlane32_swap_b32 v{48+4*h+1}, v{48+4*h+3}")
            A("s_nop 1")
            A(f"buffer_store_dwordx4 {vr(48+4*h,4)}, v{VOUT}, s[{SB}:{SB+3}], 0 offen offset:{32*h} {self.o.get('outfl', '')}")
        self.stampit(167)
        self.stamp_flush(167, 114, VLANE)
        A("s_endpgm")

    def build(self):
        A = self.A
        A.label("L_code0")
        self.prologue()
        self.helper_p1()
        self.helper_p2()
        A.label("L_groupa")
        self.p1_compute()
        self.p2_compute(0)
        self.groupb_p1()
        self.p2_compute(1)
        self.att_tail()
        self.p3()
        self.fallback()
        A.label("L_end")
        A("s_endpgm")
        A.label("L_code1")
        return HEADER.format(grid=256, block=768, lds=LDS_BYTES, name=KN) + A.text() + FOOTER.format(name=KN, nvgpr=168, accum=168)


if __name__ == "__main__":
    import argparse, json
    ap = argparse.ArgumentParser()
    ap.add_argument("out"); ap.add_argument("--rot", type=int, default=0); ap.add_argument("--stamp", action="store_true")
    ap.add_argument("--nomoe", action="store_true"); ap.add_argument("--opts", default="{}")
    a = ap.parse_args()
    g = Gen(rot=a.rot, stamp=a.stamp, moe=not a.nomoe, opts=json.loads(a.opts))
    open(a.out, "w").write(g.build())
```
